```python
import torch

def _softmax(x, axis=-1):
    return torch.softmax(x, dim=axis)
def _gelu(x):
    return torch.nn.functional.gelu(x, approximate="tanh")
def _silu(x):
    return torch.nn.functional.silu(x)
def _sigmoid(x):
    return torch.sigmoid(x)
def _layernorm(x, axis=-1, eps=1e-5):
    m = x.mean(dim=axis, keepdim=True)
    v = x.var(dim=axis, keepdim=True, unbiased=False)
    return (x - m) / torch.sqrt(v + eps)
def _scatter_add(tgt, idx, src, axis=0):
    return tgt.clone().index_add_(axis, idx, src)
def _segment_sum(src, seg, n):
    out = torch.zeros((n,) + src.shape[1:], dtype=src.dtype)
    return out.index_add_(0, seg, src)
def _pad(x, pw):
    flat = tuple(v for pair in reversed(pw) for v in pair)
    return torch.nn.functional.pad(x, flat)

kernel_name = 'parallel_sum__ssm_conv_h3__dense_activation_silu__prompt'

def setup_inputs():

    _w = (lambda a: (lambda t: t.to(torch.bfloat16) if t.is_floating_point() else t)(torch.as_tensor(a)))
    def _A_setup():
        B, S, D = 1, 2048, 1024
        ks = 4
        return {
            "q": _w((lambda *s: torch.randn(*s, dtype=torch.bfloat16) * 0.05)(B, S, D)),
            "k": _w((lambda *s: torch.randn(*s, dtype=torch.bfloat16) * 0.2)(B, S, D)),
            "v": _w((lambda *s: torch.randn(*s, dtype=torch.bfloat16) * 0.2)(B, S, D)),
            "shift_k": _w((lambda *s: torch.randn(*s, dtype=torch.bfloat16) * 0.2)(D, ks) * 0.5),
            "ssm_k": _w((lambda *s: torch.randn(*s, dtype=torch.bfloat16) * 0.4)(D, S) * (1.0 / S ** 0.5)),
            "ssm_D": _w((lambda *s: torch.randn(*s, dtype=torch.bfloat16) * 0.2)(D)),
        }
    _A_in = _A_setup()

    def _B_setup():
        B, S, D, F = 1, 2048, 1024, 3584
        return {
            "x": _w((lambda *s: torch.randn(*s, dtype=torch.bfloat16) * 0.05)(B, S, D)),
            "w1": _w((lambda *s: torch.randn(*s, dtype=torch.bfloat16) * 0.8)(D, F) * (D ** -0.5)),
            "w2": _w((lambda *s: torch.randn(*s, dtype=torch.bfloat16) * 0.1)(F, D) * (F ** -0.5)),
        }
    _B_in = _B_setup()

    return {
        "A_q": _A_in["q"],
        "A_k": _A_in["k"],
        "A_v": _A_in["v"],
        "A_shift_k": _A_in["shift_k"],
        "A_ssm_k": _A_in["ssm_k"],
        "A_ssm_D": _A_in["ssm_D"],
        "B_x": _B_in["x"],
        "B_w1": _B_in["w1"],
        "B_w2": _B_in["w2"],
    }

def reference(A_q, A_k, A_v, A_shift_k, A_ssm_k, A_ssm_D, B_x, B_w1, B_w2):
    def _A_ref(q, k, v, shift_k, ssm_k, ssm_D):
        B, S, D = q.shape
        ks = shift_k.shape[-1]
        k_pad = _pad(k, ((0, 0), (ks - 1, 0), (0, 0)))
        k_shift = torch.zeros_like(k)
        for t in range(ks):
            k_shift = k_shift + k_pad[:, t:t + S, :] * shift_k[:, ks - 1 - t][None, None, :]
        kv = k_shift * v
        L = 2 * S
        kv_pad = _pad(kv, ((0, 0), (0, S), (0, 0)))
        kf_pad = _pad(ssm_k, ((0, 0), (0, S)))
        kv_f = (lambda x, axes=(-2,-1): torch.fft.rfft2(x.float(), dim=axes))(kv_pad[:, None, :, :], axes=(1, 2))
        kf_f = (lambda x, axes=(-2,-1): torch.fft.rfft2(x.float(), dim=axes))(kf_pad[:, None, :], axes=(1, 2))
        kf_f = (lambda x, *d: x.permute(*d))(kf_f, 1, 2, 0)
        y_f = kv_f * kf_f[None, :, :, :]
        y = (lambda x, s, axes=(-2,-1): torch.fft.irfft2(x, s=s, dim=axes).to(torch.bfloat16))(y_f, (1, L), axes=(1, 2))[:, 0, :S, :]
        y = y + kv * ssm_D[None, None, :]
        return q * y

    def _B_ref(x, w1, w2):
        h = torch.einsum("bsd,df->bsf", x, w1)
        h = _silu(h)
        out = torch.einsum("bsf,fd->bsd", h, w2)
        return out

    x = A_q
    xn = _layernorm(x, axis=-1)
    return x + _A_ref(xn, A_k, A_v, A_shift_k, A_ssm_k, A_ssm_D) + _B_ref(xn, B_w1, B_w2)
```

```python
class Asm:
    def __init__(self):
        self.L = []
        self.uid = 0
    def __call__(self, s):
        for line in s.split("\n"):
            line = line.strip()
            if line:
                self.L.append(("    " + line) if not line.endswith(":") else line)
    def label(self, base):
        self.uid += 1
        return f"L_{base}_{self.uid}"
    def text(self):
        return "\n".join(self.L) + "\n"

def vr(b, n=1):
    return f"v{b}" if n == 1 else f"v[{b}:{b+n-1}]"
def sr(b, n=1):
    return f"s{b}" if n == 1 else f"s[{b}:{b+n-1}]"

def interleave(main, fill, start=0, per=1, every=1):
    out = []
    fi = 0
    for i, m in enumerate(main):
        out.append(m)
        if i >= start and (i - start) % every == 0:
            for _ in range(per):
                if fi < len(fill):
                    out.append(fill[fi]); fi += 1
    while fi < len(fill):
        out.append(fill[fi]); fi += 1
    return out

KD = """.section .rodata,"a"
.p2align 6
.amdhsa_kernel {name}
  .amdhsa_next_free_vgpr {vgpr}
  .amdhsa_next_free_sgpr {sgpr}
  .amdhsa_accum_offset {accum}
  .amdhsa_group_segment_fixed_size 0
  .amdhsa_kernarg_size 96
  .amdhsa_user_sgpr_count 2
  .amdhsa_user_sgpr_kernarg_segment_ptr 1
  .amdhsa_system_sgpr_workgroup_id_x 1
  .amdhsa_float_denorm_mode_32 3
.end_amdhsa_kernel
.text
"""
def kernel(name, body, vgpr, sgpr=96):
    accum = min(256, (vgpr + 3) // 4 * 4)
    return (f".globl {name}\n.p2align 8\n.type {name},@function\n{name}:\n" + body +
            KD.format(name=name, vgpr=vgpr, sgpr=sgpr, accum=accum))
```

```python
import sys
from base import *

NAME = "parallel_sum__ssm_conv_h3__dense_activation_silu__prompt"
WS_H, H_BYTES = 0, 2048*3584*2
WS_KVT, KVT_BYTES = 0x1000000, 4 << 20
WS_Z, Z_BYTES = 0x1400000, 4 << 20
WS_ST, ST_BYTES = 0x1800000, 2048*8
WS_CS, CS_BYTES = 0x1810000, 16*3584*4
P_Q, P_K, P_V, P_SK, P_SSM, P_D, P_W1, P_W2, P_OUT, P_DBG, P_WS = 36, 38, 40, 42, 44, 46, 50, 52, 54, 56, 58
MB4 = 4 << 20
W_BYTES = 1024*3584*2
LOG2E = 1.4426950408889634

def f32(x):
    import struct
    return "0x%08x" % struct.unpack("<I", struct.pack("<f", x))[0]

def srd(A, d, p, size, off=0):
    if off:
        A(f"s_add_u32 s{d}, s{p}, {off:#x}\ns_addc_u32 s{d+1}, s{p+1}, 0")
    else:
        A(f"s_mov_b32 s{d}, s{p}\ns_mov_b32 s{d+1}, s{p+1}")
    A(f"s_mov_b32 s{d+2}, {size:#x}\ns_mov_b32 s{d+3}, 0x20000")

def prologue(A, endlabel, lane="v1"):
    A(f"""s_cmp_ge_u32 s2, 256
    s_cbranch_scc1 {endlabel}
    s_load_dwordx16 s[36:51], s[0:1], 0
    s_load_dwordx8 s[52:59], s[0:1], 64
    v_lshrrev_b32 v2, 6, v0
    v_and_b32 {lane}, 63, v0
    v_readfirstlane_b32 s3, v2
    s_and_b32 s6, s2, 7
    s_lshr_b32 s7, s2, 3
    s_lshr_b32 s4, s6, 1
    s_lshl_b32 s4, s4, 2
    s_lshr_b32 s5, s7, 3
    s_add_u32 s4, s4, s5
    s_and_b32 s5, s6, 1
    s_lshl_b32 s5, s5, 3
    s_and_b32 s7, s7, 7
    s_add_u32 s5, s5, s7
    s_waitcnt lgkmcnt(0)""")

SLOT = 45056
XPART = 16384
L_CS = 3*SLOT
L_ST = L_CS + 1024
K1_LDS = L_ST + 2048

def loader_addr_x(A, lw, vx, lane="v1"):
    A(f"""v_lshrrev_b32 v2, 3, {lane}
    v_lshrrev_b32 v3, 4, {lane}
    v_xor_b32 v3, v3, {lane}
    v_and_b32 v3, 7, v3
    v_lshlrev_b32 v3, 4, v3
    v_lshl_add_u32 v3, v2, 11, v3
    s_lshl_b32 s60, s4, 18
    s_lshl_b32 s61, {lw}, 17
    s_add_u32 s60, s60, s61
    v_add_u32 v{vx}, s60, v3
    v_xor_b32 v3, 64, v{vx}""")
    for i in range(1, 8):
        src = "v3" if i & 1 else f"v{vx}"
        A(f"v_add_u32 v{vx+i}, {i*16384 - (i%4)*1024}, {src}")

def loader_addr_w(A, lw, vw, nreg, lane="v1"):
    A(f"""s_mul_i32 s60, {nreg}, 448
    s_mul_i32 s61, {lw}, {32*7168}
    s_add_u32 s60, s60, s61
    s_movk_i32 s62, 6720
    v_lshl_add_u32 v4, {lane}, 4, s60""")
    for i in range(7):
        A(f"""v_add_u32 v2, {64*i}, {lane}
        v_mul_u32_u24 v2, 2341, v2
        v_lshrrev_b32 v2, 16, v2
        v_mad_u32_u24 v3, v2, s62, v4
        v_and_b32 v2, 8, v2
        v_lshlrev_b32 v2, 2, v2
        v_xor_b32 v3, v2, v3
        v_add_u32 v{vw+i}, {1024*i - (i%4)*1024}, v3
        v_add_u32 v{vw+i+7}, {1024*i + 16*7168 - ((i+7)%4)*1024}, v3""")
for q in range(448):
    assert (q*2341) >> 16 == q // 28

def issue_x(A, vx, srdx, soff, m0base):
    for i in range(8):
        if i % 4 == 0:
            A(f"s_add_u32 m0, {m0base}, {(i//4)*4096}\ns_nop 0")
        A(f"buffer_load_dwordx4 v{vx+i}, {sr(srdx,4)}, {soff} offen offset:{(i%4)*1024} lds")
def issue_w(A, vw, srdw, soff, m0base):
    for i in range(14):
        if i % 4 == 0:
            A(f"s_add_u32 m0, {m0base}, {(i//4)*4096}\ns_nop 0")
        A(f"buffer_load_dwordx4 v{vw+i}, {sr(srdw,4)}, {soff} offen offset:{(i%4)*1024} lds")

def w_read_addr(A, wf, we, wo, w6, lane="v1"):
    A(f"""v_lshrrev_b32 v2, 4, {lane}
    v_bfe_u32 v3, {lane}, 2, 2
    v_lshl_add_u32 v3, v2, 3, v3
    v_mul_u32_u24 v3, 448, v3
    v_and_b32 v4, 3, {lane}
    v_lshl_add_u32 v3, v4, 3, v3
    v_add_u32 v3, {XPART}, v3
    v_and_b32 v2, 1, v2
    v_lshlrev_b32 v4, 5, v2
    s_lshl_b32 s60, {wf}, 8
    v_add_u32 v5, s60, v3
    v_add_u32 v{we}, v5, v4
    v_sub_u32 v{wo}, v5, v4
    v_xor_b32 v2, {wf}, v2
    v_lshlrev_b32 v2, 5, v2
    v_add3_u32 v{w6}, v3, v2, 64
    v_add_u32 v{w6}, 128, v{w6}""")

def w_reads(dst, step, we, wo, w6, ft):
    out = []
    for hh in range(2):
        off = (32*step + 4*hh)*448
        if ft < 6:
            out.append(f"ds_read_b64_tr_b16 {vr(dst+hh*2,2)}, v{we if ft%2==0 else wo} offset:{off+ft*32}")
        else:
            out.append(f"ds_read_b64_tr_b16 {vr(dst+hh*2,2)}, v{w6} offset:{off}")
    return out

def job_stats(A, sw, sc=""):
    srd(A, 8, P_Q, MB4)
    srd(A, 12, P_WS, ST_BYTES, WS_ST)
    A(f"""s_lshl_b32 s60, s2, 3
    s_lshl_b32 s61, {sw}, 2
    s_add_u32 s60, s60, s61
    v_lshrrev_b32 v2, 4, v1
    v_add_u32 v2, s60, v2
    v_and_b32 v3, 15, v1
    v_lshlrev_b32 v4, 4, v3
    v_lshl_add_u32 v4, v2, 11, v4""")
    for j in range(8):
        A(f"buffer_load_dwordx4 {vr(16+4*j,4)}, v4, s[8:11], 0 offen offset:{j*256}")
    A("s_waitcnt vmcnt(0)")
    X = 48
    for j in range(32):
        A(f"v_lshlrev_b32 v{X+2*j}, 16, v{16+j}\nv_and_b32 v{X+2*j+1}, 0xffff0000, v{16+j}")
    A(f"v_pk_add_f32 v[6:7], {vr(X,2)}, {vr(X+2,2)}")
    A(f"v_pk_add_f32 v[8:9], {vr(X+4,2)}, {vr(X+6,2)}")
    for j in range(4, 32):
        d = 6 if j % 2 == 0 else 8
        A(f"v_pk_add_f32 {vr(d,2)}, {vr(d,2)}, {vr(X+2*j,2)}")
    def rowsum(reg):
        A(f"v_pk_add_f32 v[6:7], v[6:7], v[8:9]\ns_nop 0\nv_add_f32 v{reg}, v6, v7")
        for r in (8, 4, 2, 1):
            A(f"s_nop 1\nv_add_f32_dpp v{reg}, v{reg}, v{reg} row_ror:{r} row_mask:0xf bank_mask:0xf")
        A(f"v_mul_f32 v{reg}, {f32(1/1024)}, v{reg}")
    rowsum(10)
    for j in range(32):
        A(f"v_pk_add_f32 {vr(X+2*j,2)}, {vr(X+2*j,2)}, v[10:11] op_sel_hi:[1,0] neg_lo:[0,1] neg_hi:[0,1]")
    A(f"v_pk_mul_f32 v[6:7], {vr(X,2)}, {vr(X,2)}")
    A(f"v_pk_mul_f32 v[8:9], {vr(X+2,2)}, {vr(X+2,2)}")
    for j in range(2, 32):
        d = 6 if j % 2 == 0 else 8
        A(f"v_pk_fma_f32 {vr(d,2)}, {vr(X+2*j,2)}, {vr(X+2*j,2)}, {vr(d,2)}")
    rowsum(11)
    A(f"""v_cvt_pk_bf16_f32 v12, v10, v11
    v_lshlrev_b32 v10, 16, v12
    v_and_b32 v11, 0xffff0000, v12
    v_add_f32 v11, {f32(1e-5)}, v11
    v_cvt_pk_bf16_f32 v11, v11, v11
    v_lshlrev_b32 v11, 16, v11
    v_sqrt_f32 v11, v11
    s_nop 0
    v_cvt_pk_bf16_f32 v11, v11, v11
    v_lshlrev_b32 v11, 16, v11
    v_lshlrev_b32 v2, 3, v2
    v_cmp_eq_u32 vcc, 0, v3
    s_and_saveexec_b64 s[62:63], vcc
    buffer_store_dwordx2 v[10:11], v2, s[12:15], 0 offen {sc}
    s_mov_b64 exec, s[62:63]""")

def job_kv(A, sw):
    srd(A, 8, P_K, MB4)
    srd(A, 12, P_V, MB4)
    srd(A, 16, P_SK, 8192)
    srd(A, 20, P_WS, KVT_BYTES, WS_KVT)
    A(f"""s_lshr_b32 s60, s2, 4
    s_lshl_b32 s60, s60, 4
    s_lshl_b32 s61, {sw}, 3
    s_add_u32 s60, s60, s61
    v_lshrrev_b32 v2, 3, v1
    v_add_u32 v2, s60, v2
    s_and_b32 s61, s2, 15
    s_lshl_b32 s62, s61, 3
    v_and_b32 v3, 7, v1
    v_add_u32 v4, s62, v3
    v_lshlrev_b32 v5, 4, v4
    v_lshl_add_u32 v5, v2, 14, v5
    v_subrev_u32 v6, 6144, v5
    v_lshlrev_b32 v7, 6, v4
    s_movk_i32 s64, 4096
    s_movk_i32 s65, 8192
    s_movk_i32 s66, 12288""")
    KR, VR, TR = 16, 60, 92
    so = ["0", "s64", "s65", "s66"]
    for j in range(4):
        A(f"buffer_load_dwordx4 {vr(TR+4*j,4)}, v7, s[16:19], 0 offen offset:{16*j}")
    for r in range(3):
        A(f"buffer_load_dwordx4 {vr(KR+4*r,4)}, v6, s[8:11], {so[r//2]} offen offset:{(r%2)*2048}")
    for r in range(8):
        A(f"buffer_load_dwordx4 {vr(KR+12+4*r,4)}, v5, s[8:11], {so[r//2]} offen offset:{(r%2)*2048}")
    for r in range(8):
        A(f"buffer_load_dwordx4 {vr(VR+4*r,4)}, v5, s[12:15], {so[r//2]} offen offset:{(r%2)*2048}")
    A(f"""v_sub_u32 v8, 255, v2
    v_lshlrev_b32 v8, 6, v8
    v_and_b32 v9, 3, v3
    v_lshl_add_u32 v8, v9, 4, v8
    v_lshrrev_b32 v9, 2, v3
    v_lshl_add_u32 v8, v9, 17, v8
    s_lshl_b32 s61, s61, 18
    v_add_u32 v8, s61, v8
    s_waitcnt vmcnt(0)""")
    TW, KU, VU, OUT = 108, 116, 138, 156
    for e in range(4):
        for j in range(4):
            for c in range(2):
                src = TR + 4*e + 2*c + j//2
                if j % 2 == 0: A(f"v_lshlrev_b32 v{TW+2*j+c}, 16, v{src}")
                else: A(f"v_and_b32 v{TW+2*j+c}, 0xffff0000, v{src}")
        for r in range(11):
            A(f"v_lshlrev_b32 v{KU+2*r}, 16, v{KR+4*r+e}\nv_and_b32 v{KU+2*r+1}, 0xffff0000, v{KR+4*r+e}")
        for r in range(8):
            A(f"v_lshlrev_b32 v{VU+2*r}, 16, v{VR+4*r+e}\nv_and_b32 v{VU+2*r+1}, 0xffff0000, v{VR+4*r+e}")
        for r in range(8):
            t = 10 + 2*(r % 2)
            A(f"v_pk_mul_f32 {vr(t,2)}, {vr(KU+2*r,2)}, {vr(TW+6,2)}")
            for j in (2, 1, 0):
                A(f"v_pk_fma_f32 {vr(t,2)}, {vr(KU+2*(r+3-j),2)}, {vr(TW+2*j,2)}, {vr(t,2)}")
            A(f"v_pk_mul_f32 {vr(VU+2*r,2)}, {vr(t,2)}, {vr(VU+2*r,2)}")
        o = OUT + (e % 2)*8
        for c in range(2):
            for q in range(4):
                A(f"v_cvt_pk_bf16_f32 v{o+4*c+q}, v{VU+2*(7-2*q)+c}, v{VU+2*(6-2*q)+c}")
        for c in range(2):
            A(f"s_mov_b32 s60, {(2*e+c)*16384}\nbuffer_store_dwordx4 {vr(o+4*c,4)}, v8, s[20:23], s60 offen")

def job_colsum(A, sw, slotoff, ks, nreg, sc=""):
    WE, WO, W6 = 10, 11, 12
    w_read_addr(A, sw, WE, WO, W6)
    if slotoff != "0":
        for r in (WE, WO, W6): A(f"v_add_u32 v{r}, {slotoff}, v{r}")
    srd(A, 8, P_WS, CS_BYTES, WS_CS)
    for j in range(4): A(f"v_mov_b32 v{16+j}, 0x3f803f80")
    F, ACC = 20, 76
    for ft in range(7):
        for st in range(2):
            for x in w_reads(F + (ft*2+st)*4, st, WE, WO, W6, ft): A(x)
        if ft % 2 == 1: A("s_waitcnt lgkmcnt(0)")
    A("s_waitcnt lgkmcnt(0)")
    for ft in range(7):
        A(f"v_mfma_f32_16x16x32_bf16 {vr(ACC+4*ft,4)}, {vr(F+ft*8,4)}, v[16:19], 0")
    for ft in range(7):
        A(f"v_mfma_f32_16x16x32_bf16 {vr(ACC+4*ft,4)}, {vr(F+ft*8+4,4)}, v[16:19], {vr(ACC+4*ft,4)}")
    A(f"""s_mul_i32 s60, {ks}, {3584*4}
    s_mul_i32 s61, {nreg}, {224*4}
    s_add_u32 s60, s60, s61
    s_lshl_b32 s61, {sw}, 9
    s_add_u32 s61, s61, s60
    s_lshl_b32 s62, {sw}, 6
    s_add_u32 s62, s62, s60
    v_and_b32 v2, 48, v1
    v_and_b32 v3, 15, v1
    v_cmp_eq_u32 vcc, 0, v3
    s_nop 4
    s_and_saveexec_b64 s[64:65], vcc""")
    for ft in range(6):
        A(f"buffer_store_dwordx4 {vr(ACC+4*ft,4)}, v2, s[8:11], s61 offen offset:{ft*64} {sc}")
    A(f"buffer_store_dwordx4 {vr(ACC+24,4)}, v2, s[8:11], s62 offen offset:{6*64} {sc}")
    A("s_mov_b64 exec, s[64:65]")

def job_gather(A, sw, sc=""):
    srd(A, 8, P_WS, CS_BYTES, WS_CS)
    srd(A, 12, P_WS, ST_BYTES, WS_ST)
    A(f"""v_and_b32 v2, 31, v1
    v_min_u32 v2, 27, v2
    v_lshrrev_b32 v3, 5, v1
    s_mov_b32 s60, {8*3584*4}
    v_mul_lo_u32 v3, v3, s60
    v_lshl_add_u32 v3, v2, 4, v3
    s_mul_i32 s60, s5, {224*4}
    s_mul_i32 s61, {sw}, {112*4}
    s_add_u32 s60, s60, s61""")
    for j in range(8):
        A(f"buffer_load_dwordx4 {vr(16+4*j,4)}, v3, s[8:11], s60 offen {sc}\ns_add_u32 s60, s60, {3584*4}")
    A(f"""s_lshl_b32 s60, s4, 10
    s_lshl_b32 s62, {sw}, 9
    s_add_u32 s60, s60, s62
    v_lshlrev_b32 v4, 3, v1
    buffer_load_dwordx2 v[8:9], v4, s[12:15], s60 offen {sc}
    s_waitcnt vmcnt(0)""")
    for j in range(1, 8):
        A(f"v_pk_add_f32 v[16:17], v[16:17], {vr(16+4*j,2)}\nv_pk_add_f32 v[18:19], v[18:19], {vr(18+4*j,2)}")
    for q in range(4): A(f"v_mov_b32 v{20+q}, v{16+q}")
    A("s_nop 1")
    for q in range(4): A(f"v_permlane32_swap_b32 v{16+q}, v{20+q}")
    A(f"""v_rcp_f32 v10, v9
    v_pk_add_f32 v[16:17], v[16:17], v[20:21]
    v_pk_add_f32 v[18:19], v[18:19], v[22:23]
    v_mul_f32 v10, {f32(-LOG2E)}, v10
    v_mov_b32 v11, 0
    v_lshl_add_u32 v2, v2, 4, s61
    v_add_u32 v2, {L_CS}, v2
    ds_write_b128 v2, v[16:19]
    s_lshl_b32 s62, {sw}, 10
    s_add_u32 s62, s62, {L_ST}
    v_lshl_add_u32 v4, v1, 4, s62
    ds_write_b128 v4, v[8:11]
    s_waitcnt lgkmcnt(0)""")

def gen_k0():
    A = Asm()
    prologue(A, "L_k0_end")
    A("s_lshr_b32 s70, s2, 4\ns_and_b32 s71, s2, 15")
    srd(A, 24, P_W1, W_BYTES)
    loader_addr_w(A, "s3", 200, "s71")
    A(f"s_mul_i32 s72, s70, {64*7168}\ns_mul_i32 s73, s3, 14336\ns_add_u32 s73, s73, {XPART}")
    issue_w(A, 200, 24, "s72", "s73")
    job_stats(A, "s3")
    job_kv(A, "s3")
    A("s_waitcnt vmcnt(0)\ns_barrier")
    job_colsum(A, "s3", "0", "s70", "s71")
    A("L_k0_end:\ns_endpgm")
    return kernel("k0_kernel", A.text(), 256)

def gen_k1():
    A = Asm()
    prologue(A, "L_k1_end")
    A("""s_cmp_lt_u32 s3, 4
    s_cbranch_scc1 L_k1_cons
    s_cmp_lt_u32 s3, 6
    s_cbranch_scc1 L_k1_load""")
    A("s_sub_u32 s33, s3, 6")
    job_gather(A, "s33")
    for i in range(17): A("s_barrier")
    A("s_endpgm")
    A("L_k1_load:\ns_sub_u32 s33, s3, 4")
    srd(A, 8, P_Q, MB4)
    srd(A, 12, P_W1, W_BYTES)
    VX, VW = 16, 24
    loader_addr_x(A, "s33", VX)
    A(f"""s_lshl_b32 s70, s33, 13
    s_mul_i32 s71, s33, 14336
    s_add_u32 s71, s71, {XPART}
    s_mov_b32 s72, 0
    s_mov_b32 s73, 0""")
    issue_x(A, VX, 8, "s72", "s70")
    loader_addr_w(A, "s33", VW, "s5")
    issue_w(A, VW, 12, "s73", "s71")
    A(f"""s_mov_b32 s74, 1
    s_mov_b32 s75, {SLOT}
    L_k1_lloop:
    s_add_u32 s72, s72, 128
    s_add_u32 s73, s73, {64*7168}
    s_add_u32 s76, s70, s75
    s_add_u32 s77, s71, s75""")
    issue_x(A, VX, 8, "s72", "s76")
    issue_w(A, VW, 12, "s73", "s77")
    A(f"""s_add_u32 s75, s75, {SLOT}
    s_cmp_eq_u32 s75, {3*SLOT}
    s_cselect_b32 s75, 0, s75
    s_add_u32 s74, s74, 1
    s_cmp_lt_u32 s74, 16
    s_waitcnt vmcnt(22)
    s_barrier
    s_cbranch_scc1 L_k1_lloop
    s_waitcnt vmcnt(0)
    s_barrier
    s_barrier
    s_endpgm""")
    A("L_k1_cons:\ns_and_b32 s34, s3, 1\ns_lshr_b32 s35, s3, 1")
    XA0, XA1, WE, WO, W6, LN = 200, 201, 202, 203, 204, 205
    A(f"v_mov_b32 v{LN}, v1")
    w_read_addr(A, "s35", WE, WO, W6)
    A(f"""v_and_b32 v2, 15, v1
    v_lshrrev_b32 v3, 1, v2
    v_lshrrev_b32 v4, 4, v1
    v_xor_b32 v3, v3, v4
    v_lshlrev_b32 v3, 4, v3
    v_lshl_add_u32 v3, v2, 7, v3
    s_lshl_b32 s60, s34, 13
    v_add_u32 v{XA0}, s60, v3
    v_xor_b32 v{XA1}, 64, v{XA0}""")
    for i in range(112): A(f"v_mov_b32 v{i}, 0")
    SW = [112, 156]; SX = [140, 184]
    def reads(p, step):
        xa = XA0 if step == 0 else XA1
        xr = [f"ds_read_b128 {vr(SX[p]+4*mt,4)}, v{xa} offset:{mt*2048}" for mt in range(4)]
        wr = [w_reads(SW[p]+4*ft, step, WE, WO, W6, ft) for ft in range(7)]
        return [xr[0]] + wr[0] + xr[1:] + [x for l in wr[1:] for x in l]
    def mfmas(p):
        return [f"v_mfma_f32_16x16x32_bf16 {vr((ft*4+mt)*4,4)}, {vr(SW[p]+4*ft,4)}, {vr(SX[p]+4*mt,4)}, {vr((ft*4+mt)*4,4)}"
                for ft in range(7) for mt in range(4)]
    A("s_setprio 1\ns_barrier")
    for x in reads(0, 0): A(x)
    A(f"s_mov_b32 s74, 0\ns_mov_b32 s75, 0\nL_k1_cloop:\ns_waitcnt lgkmcnt(0)")
    adv = [f"s_add_u32 s75, s75, 1\ns_cmp_eq_u32 s75, 3", f"s_cselect_b32 s76, {(-2*SLOT) & 0xffffffff}, {SLOT}\ns_cselect_b32 s75, 0, s75"]
    adv = [f"s_add_u32 s75, s75, 1\ns_cmp_eq_u32 s75, 3", f"s_cselect_b32 s76, s78, s79\ns_cselect_b32 s75, 0, s75"]
    adv += [f"v_add_u32 v{r}, s76, v{r}" for r in (XA0, XA1, WE, WO, W6)]
    A.L.insert(len(A.L) - 2, f"    s_mov_b32 s78, {(-2*SLOT) & 0xffffffff}\n    s_mov_b32 s79, {SLOT}")
    for x in interleave(mfmas(0), reads(1, 1) + adv): A(x)
    A("s_waitcnt lgkmcnt(0)\ns_barrier")
    for x in interleave(mfmas(1), reads(0, 0) + ["s_add_u32 s74, s74, 1", "s_cmp_lt_u32 s74, 16"]): A(x)
    A("s_cbranch_scc1 L_k1_cloop")
    A("s_waitcnt lgkmcnt(0)")
    srd(A, 8, P_WS, H_BYTES, WS_H)
    ST, CS, T0, OUT = 112, 128, 156, 172
    A(f"""v_and_b32 v206, 15, v{LN}
    v_lshlrev_b32 v206, 4, v206
    s_lshl_b32 s60, s34, 10
    s_add_u32 s60, s60, {L_ST}
    v_add_u32 v206, s60, v206
    v_and_b32 v207, 48, v{LN}
    s_lshl_b32 s60, s35, 9
    s_add_u32 s60, s60, {L_CS}
    v_add_u32 v208, s60, v207
    s_lshl_b32 s60, s35, 6
    s_add_u32 s60, s60, {L_CS + 384}
    v_add_u32 v209, s60, v207""")
    for mt in range(4): A(f"ds_read_b128 {vr(ST+4*mt,4)}, v206 offset:{mt*256}")
    for ft in range(6): A(f"ds_read_b128 {vr(CS+4*ft,4)}, v208 offset:{ft*64}")
    A(f"ds_read_b128 {vr(CS+24,4)}, v209")
    A(f"""s_mul_i32 s60, s4, {112*8192}
    s_mul_i32 s61, s5, {7*8192}
    s_add_u32 s60, s60, s61
    s_lshl_b32 s61, s34, 12
    s_add_u32 s60, s60, s61
    s_add_u32 s64, s60, {3*8192}
    s_lshl_b32 s61, s35, 15
    s_add_u32 s61, s61, s60
    s_add_u32 s62, s61, 8192
    s_add_u32 s63, s61, 16384
    v_lshlrev_b32 v206, 4, v{LN}
    s_lshl_b32 s65, s35, 3
    v_add_u32 v207, s65, v206
    s_waitcnt lgkmcnt(0)""")
    def silu_tile(ft, mt, dst, t):
        a = (ft*4+mt)*4; st = ST+4*mt; cs = CS+4*ft
        for h in range(2):
            A(f"v_pk_fma_f32 {vr(a+2*h,2)}, {vr(cs+2*h,2)}, {vr(st,2)}, {vr(a+2*h,2)} op_sel_hi:[1,0,1] neg_lo:[1,0,0] neg_hi:[1,0,0]")
        for h in range(2):
            A(f"v_pk_mul_f32 {vr(t+2*h,2)}, {vr(a+2*h,2)}, {vr(st+2,2)} op_sel_hi:[1,0]")
        for q in range(4): A(f"v_exp_f32 v{t+q}, v{t+q}")
        A("s_nop 0")
        for h in range(2):
            A(f"v_pk_fma_f32 {vr(t+2*h,2)}, {vr(t+2*h,2)}, {vr(st,2)}, {vr(st,2)} op_sel:[0,1,1] op_sel_hi:[1,1,1]")
        for q in range(4): A(f"v_rcp_f32 v{t+q}, v{t+q}")
        A("s_nop 0")
        for h in range(2):
            A(f"v_pk_mul_f32 {vr(t+2*h,2)}, {vr(t+2*h,2)}, {vr(a+2*h,2)}")
        for h in range(2):
            A(f"v_cvt_pk_bf16_f32 v{dst+h}, v{t+2*h}, v{t+2*h+1}")
    cnt = 0
    for pr in range(3):
        for mt in range(4):
            o = OUT + 4*(cnt % 4); cnt += 1
            silu_tile(2*pr, mt, o, T0)
            silu_tile(2*pr+1, mt, o+2, T0+4)
            A(f"buffer_store_dwordx4 {vr(o,4)}, v206, s[8:11], s{61+pr} offen offset:{mt*1024}")
    for mt in range(4):
        o = OUT + 4*(cnt % 4); cnt += 1
        silu_tile(6, mt, o, T0 + 4*(mt % 2))
        A(f"buffer_store_dwordx2 {vr(o,2)}, v207, s[8:11], s64 offen offset:{mt*1024}")
    A("L_k1_end:\ns_endpgm")
    return kernel("k1_kernel", A.text(), 256)
```

```python
from gen1 import *

RING = 32768
CREG = 20224
HA0, HA1, UA, UB = 0, 4352, 8704, 8704 + 5760
K2_LDS = RING + 4*CREG
E_OFF, ZT_OFF, XT_OFF = 0, 8192, 8192 + 4096

def conv_job(A, cw, bar, sc=""):
    srd(A, 8, P_WS, KVT_BYTES, WS_KVT)
    srd(A, 12, P_SSM, MB4)
    srd(A, 16, P_WS, Z_BYTES, WS_Z)
    A(f"""s_lshr_b32 s60, s2, 3
    s_lshl_b32 s60, s60, 5
    s_lshl_b32 s61, {cw}, 3
    s_add_u32 s60, s60, s61
    s_and_b32 s61, s2, 7
    s_add_u32 s68, s60, s61
    s_lshl_b32 s69, s68, 12
    s_lshl_b32 s60, s2, 14
    s_lshl_b32 s61, {cw}, 4
    s_add_u32 s60, s60, s61
    v_lshlrev_b32 v2, 6, v1
    v_lshlrev_b32 v3, 4, v1""")
    U, H = 16, 32
    for j in range(4):
        A(f"buffer_load_dwordx4 {vr(U+4*j,4)}, v2, s[8:11], s60 offen\ns_add_u32 s60, s60, 4096")
    for j in range(4):
        A(f"buffer_load_dwordx4 {vr(H+4*j,4)}, v3, s[12:15], s69 offen offset:{j*1024}")
    A(f"""s_lshl_b32 s60, s68, 1
    s_and_b32 s60, s60, 0xfffffffc
    s_load_dword s67, s[{P_D}:{P_D+1}], s60
    s_mul_i32 s70, {cw}, {CREG}
    s_add_u32 s70, s70, {RING}
    v_add_u32 v4, s70, v3
    v_lshrrev_b32 v5, 4, v1
    v_mul_u32_u24 v5, 32, v5
    v_add_u32 v5, v5, v4
    v_mov_b32 v8, 0
    v_mov_b32 v9, 0
    v_mov_b32 v10, 0
    v_mov_b32 v11, 0""")
    A(f"""ds_write_b128 v4, v[8:11] offset:{HA0}
    ds_write_b128 v4, v[8:11] offset:{HA1}
    ds_write_b128 v4, v[8:11] offset:{UA + 16*288 - 32}
    ds_write_b128 v4, v[8:11] offset:{UA + 20*288 - 1024}
    ds_write_b128 v4, v[8:11] offset:{UB + 16*288 - 32}
    ds_write_b128 v4, v[8:11] offset:{UB + 20*288 - 1024}""")
    bar(6)
    A("s_waitcnt vmcnt(0) lgkmcnt(0)")
    A(f"""s_lshr_b32 s60, s67, 16
    s_and_b32 s61, s68, 1
    s_cmp_eq_u32 s61, 1
    s_cselect_b32 s67, s60, s67
    s_lshl_b32 s67, s67, 16""")
    B2, H0 = 48, 64
    for j in range(4):
        A(f"ds_write_b128 v5, {vr(U+4*j,4)} offset:{UA + j*1152}")
        A(f"ds_write_b128 v4, {vr(H+4*j,4)} offset:{HA1 + 256 + j*1024}")
    for j in range(4):
        for q in range(3): A(f"v_mov_b32 v{B2+4*j+q}, v{U+4*j+q+1}")
        A(f"v_mov_b32_dpp v{B2+4*j+3}, v{U+4*j} wave_shl:1 row_mask:0xf bank_mask:0xf bound_ctrl:0")
        A(f"v_mov_b32_dpp v12, v{H+4*j+3} wave_shr:1 row_mask:0xf bank_mask:0xf bound_ctrl:0")
        if j < 3: A(f"v_readlane_b32 s60, v{U+4*j+4}, 0")
        if j > 0: A(f"v_readlane_b32 s61, v{H+4*j-1}, 63")
        A("s_nop 3")
        if j < 3: A(f"v_writelane_b32 v{B2+4*j+3}, s60, 63")
        if j > 0: A(f"v_writelane_b32 v12, s61, 0")
        A(f"v_alignbit_b32 v{H0+4*j}, v{H+4*j}, v12, 16")
        for q in range(1, 4): A(f"v_alignbit_b32 v{H0+4*j+q}, v{H+4*j+q}, v{H+4*j+q-1}, 16")
        A(f"ds_write_b128 v5, {vr(B2+4*j,4)} offset:{UB + j*1152}")
        A(f"ds_write_b128 v4, {vr(H0+4*j,4)} offset:{HA0 + 256 + j*1024}")
    A(f"""v_and_b32 v6, 15, v1
    v_cmp_eq_u32 vcc, 0, v6
    s_and_saveexec_b64 s[62:63], vcc""")
    for j in range(1, 4):
        A(f"ds_write_b128 v5, {vr(U+4*j,4)} offset:{UA + j*1152 - 32}")
        A(f"ds_write_b128 v5, {vr(B2+4*j,4)} offset:{UB + j*1152 - 32}")
    A(f"""s_and_b64 exec, exec, -2
    ds_write_b128 v5, {vr(U,4)} offset:{UA - 32}
    ds_write_b128 v5, {vr(B2,4)} offset:{UB - 32}
    s_mov_b64 exec, s[62:63]""")
    AA, BA = 14, 15
    A(f"""v_lshrrev_b32 v7, 4, v1
    v_add_u32 v{AA}, v6, v7
    v_lshl_add_u32 v{AA}, v{AA}, 4, s70
    v_and_b32 v8, 3, v1
    v_sub_u32 v8, 3, v8
    v_mul_u32_u24 v8, 288, v8
    v_lshl_add_u32 v8, v7, 4, v8
    v_bfe_u32 v9, v1, 2, 1
    v_sub_u32 v9, 1, v9
    v_mul_u32_u24 v9, 5760, v9
    v_bfe_u32 v10, v1, 3, 1
    v_sub_u32 v10, 1, v10
    v_lshlrev_b32 v10, 3, v10
    v_add3_u32 v8, v8, v9, v10
    v_add_u32 v{BA}, s70, v8""")
    ACC = 16; SA = [48, 96]; SB = [80, 128]
    A("s_waitcnt lgkmcnt(0)")
    for i in range(32): A(f"v_mov_b32 v{ACC+i}, 0")
    def reads(p, mm, nxt):
        ar = {}
        for a in range(4):
            for rho in range(2):
                ar[(a, rho)] = f"ds_read_b128 {vr(SA[p]+(a*2+rho)*4,4)}, v{AA} offset:{(HA0, HA1)[rho] + 16 + 64*(mm + 4*nxt + 16*a)}"
        br = {}
        for e in range(4):
            off = UA + (12 - 4*e + nxt)*288 + 64*mm
            br[e] = [f"ds_read_b64 {vr(SB[p]+e*4+2*h,2)}, v{BA} offset:{off+8*h}" for h in range(2)]
        return br[0] + [ar[(0,0)], ar[(0,1)]] + br[1] + br[2] + br[3] + [ar[(a, r)] for a in (1,2,3) for r in range(2)]
    def mfmas(p):
        out = []
        for a in range(4):
            for c in range(a, 4):
                for rho in range(2):
                    d = vr(ACC+(c*2+rho)*4, 4)
                    out.append(f"v_mfma_f32_16x16x32_bf16 {d}, {vr(SA[p]+(a*2+rho)*4,4)}, {vr(SB[p]+(c-a)*4,4)}, {d}")
        return out
    for x in reads(0, 0, 0): A(x)
    lp = A.label("conv")
    A(f"s_mov_b32 s71, 0\n{lp}:")
    for mm in range(4):
        p = mm % 2
        A("s_waitcnt lgkmcnt(0)")
        seq = interleave(mfmas(p), reads(1-p, (mm+1) % 4, 1 if mm == 3 else 0))
        half = len(seq)//2
        for x in seq[:half]: A(x)
        bar(1)
        for x in seq[half:]: A(x)
        bar(1)
    A(f"""v_add_u32 v{AA}, 256, v{AA}
    v_add_u32 v{BA}, 288, v{BA}
    s_add_u32 s71, s71, 1
    s_cmp_lt_u32 s71, 4
    s_cbranch_scc1 {lp}
    s_waitcnt lgkmcnt(0)""")
    KV = 48
    A(f"""v_and_b32 v8, 3, v1
    v_bfe_u32 v9, v1, 2, 2
    v_lshrrev_b32 v7, 4, v1
    v_sub_u32 v10, 3, v8
    v_mul_u32_u24 v10, 288, v10
    v_lshlrev_b32 v11, 6, v7
    v_lshl_add_u32 v11, v9, 2, v11
    v_sub_u32 v10, v10, v11
    v_add_u32 v10, s70, v10
    v_mul_u32_u24 v12, 272, v8
    v_add3_u32 v12, v12, v11, s70""")
    for c in range(4):
        for r in range(4):
            A(f"ds_read_b32 v{KV+c*4+r}, v10 offset:{UA + (12-4*c)*288 + 252 - 16*r}")
        A("s_waitcnt lgkmcnt(8)") if c >= 2 else None
    A("s_waitcnt lgkmcnt(0)")
    for c in range(4):
        for r in range(4):
            y0, y1, kv = ACC+(c*2)*4+r, ACC+(c*2+1)*4+r, KV+c*4+r
            A(f"""v_and_b32 v8, 0xffff0000, v{kv}
            v_lshlrev_b32 v9, 16, v{kv}
            v_fmac_f32 v{y0}, s67, v8
            v_fmac_f32 v{y1}, s67, v9
            v_cvt_pk_bf16_f32 v{kv}, v{y0}, v{y1}
            ds_write_b32 v12, v{kv} offset:{HA0 + c*4*272 + 16*r}""")
    A(f"""v_lshrrev_b32 v5, 4, v1
    v_lshl_add_u32 v5, v5, 4, v4
    s_waitcnt lgkmcnt(0)""")
    for c in range(4): A(f"ds_read_b128 {vr(64+4*c,4)}, v5 offset:{HA0 + c*4*272}")
    for c in range(4):
        A(f"s_waitcnt lgkmcnt({3-c})\nbuffer_store_dwordx4 {vr(64+4*c,4)}, v3, s[16:19], s69 offen offset:{c*1024} {sc}")

def gen_k2conv():
    A = Asm()
    prologue(A, "L_k2_end")
    conv_job(A, "s3", lambda n: None)
    A("L_k2_end:\ns_endpgm")
    return kernel("k2_kernel", A.text(), 168)

def eprep_job(A, cw, sc=""):
    srd(A, 8, P_WS, Z_BYTES, WS_Z)
    srd(A, 12, P_Q, MB4)
    srd(A, 20, P_WS, ST_BYTES, WS_ST)
    A(f"""s_mul_i32 s70, {cw}, {CREG}
    s_add_u32 s70, s70, {RING}
    s_lshl_b32 s60, s4, 7
    s_lshl_b32 s61, {cw}, 5
    s_add_u32 s60, s60, s61
    s_lshl_b32 s61, s5, 18
    s_lshl_b32 s62, s60, 1
    s_add_u32 s61, s61, s62
    v_lshrrev_b32 v2, 2, v1
    v_and_b32 v3, 3, v1
    v_lshlrev_b32 v3, 4, v3
    v_lshl_add_u32 v2, v2, 12, v3""")
    for j in range(4):
        A(f"buffer_load_dwordx4 {vr(16+4*j,4)}, v2, s[8:11], s61 offen {sc}\ns_add_u32 s61, s61, {16*4096}")
    A(f"""s_lshl_b32 s61, s60, 11
    s_lshl_b32 s62, s5, 7
    s_add_u32 s61, s61, s62
    v_lshrrev_b32 v4, 3, v1
    v_and_b32 v5, 7, v1
    v_lshlrev_b32 v5, 4, v5
    v_lshl_add_u32 v6, v4, 11, v5""")
    for j in range(4):
        A(f"buffer_load_dwordx4 {vr(32+4*j,4)}, v6, s[12:15], s61 offen\ns_add_u32 s61, s61, {8*2048}")
    A(f"""s_lshl_b32 s61, s60, 3
    v_and_b32 v7, 15, v1
    v_lshlrev_b32 v8, 3, v7
    buffer_load_dwordx2 v[48:49], v8, s[20:23], s61 offen
    buffer_load_dwordx2 v[50:51], v8, s[20:23], s61 offen offset:128
    v_lshl_add_u32 v9, v1, 4, s70
    v_mul_u32_u24 v10, 144, v4
    v_add3_u32 v10, v10, v5, s70
    v_lshrrev_b32 v11, 2, v1
    v_and_b32 v12, 3, v1
    v_lshlrev_b32 v12, 3, v12
    v_lshl_add_u32 v11, v11, 6, v12
    v_add_u32 v11, s70, v11
    v_mul_u32_u24 v12, 144, v7
    v_lshrrev_b32 v13, 4, v1
    v_lshl_add_u32 v12, v13, 3, v12
    v_add_u32 v12, s70, v12
    s_waitcnt vmcnt(0)""")
    for j in range(4):
        A(f"ds_write_b128 v9, {vr(16+4*j,4)} offset:{ZT_OFF + j*1024}")
        A(f"ds_write_b128 v10, {vr(32+4*j,4)} offset:{XT_OFF + j*8*144}")
    A("v_rcp_f32 v49, v49\nv_rcp_f32 v51, v51\ns_waitcnt lgkmcnt(0)")
    for T in range(4):
        for mt in range(2):
            i = T*2+mt
            A(f"ds_read_b64_tr_b16 {vr(16+2*i,2)}, v11 offset:{ZT_OFF + T*1024 + mt*32}")
            A(f"ds_read_b64 {vr(32+2*i,2)}, v12 offset:{XT_OFF + mt*16*144 + T*32}")
        A("s_waitcnt lgkmcnt(0)") if T % 2 == 1 else None
    for T in range(4):
        for mt in range(2):
            i = T*2+mt; st = 48+2*mt; o = 64 + 4*(i % 2)
            for h in range(2):
                A(f"""v_lshlrev_b32 v52, 16, v{16+2*i+h}
                v_and_b32 v53, 0xffff0000, v{16+2*i+h}
                v_lshlrev_b32 v54, 16, v{32+2*i+h}
                v_and_b32 v55, 0xffff0000, v{32+2*i+h}
                v_pk_add_f32 v[56:57], v[54:55], {vr(st,2)} op_sel_hi:[1,0] neg_lo:[0,1] neg_hi:[0,1]
                v_pk_mul_f32 v[56:57], v[56:57], {vr(st,2)} op_sel:[0,1] op_sel_hi:[1,1]
                v_pk_fma_f32 {vr(o+2*h,2)}, v[56:57], v[52:53], v[54:55]""")
            A(f"ds_write_b128 v9, {vr(o,4)} offset:{E_OFF + i*1024}")
    A("s_waitcnt lgkmcnt(0)")

def gemm2_waves(A):
    srd(A, 8, P_WS, H_BYTES, WS_H)
    srd(A, 12, P_W2, W_BYTES)
    WT, VH, VD0, VD1, LN = 128, 132, 133, 134, 135
    SW = [32, 48]; HR = 64; E = 136
    A(f"""v_mov_b32 v{LN}, v1
    s_lshl_b32 s60, s3, 11
    v_lshl_add_u32 v{VH}, v1, 4, s60
    v_lshrrev_b32 v2, 3, v1
    v_lshrrev_b32 v3, 4, v1
    v_lshlrev_b32 v3, 1, v3
    v_xor_b32 v3, v3, v1
    v_and_b32 v3, 7, v3
    v_lshlrev_b32 v3, 4, v3
    v_lshl_add_u32 v3, v2, 11, v3
    s_lshl_b32 s61, s3, 15
    s_lshl_b32 s62, s5, 7
    s_add_u32 s61, s61, s62
    v_add_u32 v{VD0}, s61, v3
    v_add_u32 v{VD1}, {8*2048-1024}, v{VD0}
    s_mul_i32 s72, s4, {112*8192}
    s_add_u32 s73, s72, 8192
    s_mov_b32 s74, 0""")
    def hload(step8, s):
        return [f"buffer_load_dwordx4 {vr(HR+step8*8+4*mt,4)}, v{VH}, s[8:11], {s} offen offset:{mt*1024}" for mt in range(2)]
    def dma(slot):
        return [f"s_add_u32 m0, s60, {slot*8192}",
                f"buffer_load_dwordx4 v{VD0}, s[12:15], s74 offen lds",
                f"buffer_load_dwordx4 v{VD1}, s[12:15], s74 offen offset:1024 lds"]
    adv = ["s_add_u32 s72, s72, 16384", "s_add_u32 s73, s73, 16384", "s_add_u32 s74, s74, 131072"]
    for jj in range(4):
        d = dma(jj)
        A(d[0])
        for x in hload(2*jj, "s72") + d[1:] + hload(2*jj+1, "s73") + adv: A(x)
    A(f"""v_lshrrev_b32 v2, 2, v1
    v_bfe_u32 v3, v1, 3, 2
    v_lshlrev_b32 v3, 5, v3
    v_lshl_add_u32 v3, v2, 7, v3
    v_and_b32 v2, 3, v1
    v_lshl_add_u32 v{WT}, v2, 3, v3
    v_xor_b32 v{WT+1}, 32, v{WT}
    v_xor_b32 v{WT+2}, 64, v{WT}
    v_xor_b32 v{WT+3}, 96, v{WT}""")
    for i in range(32): A(f"v_mov_b32 v{i}, 0")
    def reads(p, slot, step):
        return [f"ds_read_b64_tr_b16 {vr(SW[p]+4*T+2*hh,2)}, v{WT+T} offset:{slot*8192 + step*4096 + hh*2048}"
                for T in range(4) for hh in range(2)]
    def mfmas(p, step8):
        return [f"v_mfma_f32_16x16x32_bf16 {vr((T*2+mt)*4,4)}, {vr(SW[p]+4*T,4)}, {vr(HR+step8*8+4*mt,4)}, {vr((T*2+mt)*4,4)}"
                for T in range(4) for mt in range(2)]
    A("s_setprio 1\ns_waitcnt vmcnt(20)\ns_barrier")
    for x in reads(0, 0, 0): A(x)
    A("""s_mov_b32 s75, 0
    L_g2_loop:
    s_cmp_eq_u32 s75, 13
    s_cselect_b32 s10, 0, s10
    s_cselect_b32 s14, 0, s14""")
    for sl in range(4):
        A("s_waitcnt lgkmcnt(0)")
        for x in interleave(mfmas(0, 2*sl), reads(1, sl, 1), per=2): A(x)
        for x in hload(2*sl, "s72"): A(x)
        A("s_waitcnt vmcnt(16) lgkmcnt(0)\ns_barrier")
        d = dma(sl)
        for x in interleave(mfmas(1, 2*sl+1), d[:1] + reads(0, (sl+1) % 4, 0) + d[1:], per=2): A(x)
        for x in hload(2*sl+1, "s73") + adv: A(x)
    A("""s_add_u32 s75, s75, 1
    s_cmp_lt_u32 s75, 14
    s_cbranch_scc1 L_g2_loop
    s_waitcnt vmcnt(0)""")
    srd(A, 16, P_OUT, MB4)
    A(f"""s_mul_i32 s70, s3, {CREG}
    s_add_u32 s70, s70, {RING}
    v_lshl_add_u32 v{VH}, v{LN}, 4, s70""")
    for i in range(8): A(f"ds_read_b128 {vr(E+4*i,4)}, v{VH} offset:{E_OFF + i*1024}")
    A(f"""v_and_b32 v64, 15, v{LN}
    v_mul_u32_u24 v64, 144, v64
    v_lshrrev_b32 v65, 4, v{LN}
    v_lshl_add_u32 v64, v65, 3, v64
    v_add_u32 v64, s70, v64
    v_lshrrev_b32 v65, 3, v{LN}
    v_and_b32 v66, 7, v{LN}
    v_lshlrev_b32 v66, 4, v66
    v_mul_u32_u24 v67, 144, v65
    v_add3_u32 v67, v67, v66, s70
    v_lshl_add_u32 v68, v65, 11, v66
    s_lshl_b32 s60, s4, 18
    s_lshl_b32 s61, s3, 16
    s_add_u32 s60, s60, s61
    s_lshl_b32 s61, s5, 7
    s_add_u32 s60, s60, s61
    s_waitcnt vmcnt(0) lgkmcnt(0)""")
    for T in range(4):
        for mt in range(2):
            i = T*2+mt
            A(f"""v_pk_add_f32 {vr(4*i,2)}, {vr(4*i,2)}, {vr(E+4*i,2)}
            v_pk_add_f32 {vr(4*i+2,2)}, {vr(4*i+2,2)}, {vr(E+4*i+2,2)}
            v_cvt_pk_bf16_f32 v{72+2*i}, v{4*i}, v{4*i+1}
            v_cvt_pk_bf16_f32 v{72+2*i+1}, v{4*i+2}, v{4*i+3}
            ds_write_b64 v64, {vr(72+2*i,2)} offset:{XT_OFF + mt*16*144 + T*32}""")
    A("s_waitcnt lgkmcnt(0)")
    for j in range(4): A(f"ds_read_b128 {vr(96+4*j,4)}, v67 offset:{XT_OFF + j*8*144}")
    for j in range(4):
        A(f"s_waitcnt lgkmcnt({3-j})\nbuffer_store_dwordx4 {vr(96+4*j,4)}, v68, s[16:19], s60 offen\ns_add_u32 s60, s60, {8*2048}")

def gen_k3():
    A = Asm()
    prologue(A, "L_k3_end")
    A("s_cmp_lt_u32 s3, 4\ns_cbranch_scc1 L_k3_g\ns_sub_u32 s33, s3, 4")
    eprep_job(A, "s33")
    A("s_endpgm\nL_k3_g:")
    gemm2_waves(A)
    A("L_k3_end:\ns_endpgm")
    return kernel("k3_kernel", A.text(), 168)

HEAD = open("cdna_kernels/" + NAME + ".s.ref").read().split("; Override")[0]

def build_v1():
    hdr = HEAD + f"""; @launch kernel=k0_kernel grid=(256,1,1) block=(128,1,1) lds={SLOT}
; @launch kernel=k1_kernel grid=(256,1,1) block=(512,1,1) lds={K1_LDS}
; @launch kernel=k2_kernel grid=(256,1,1) block=(256,1,1) lds={K2_LDS}
; @launch kernel=k3_kernel grid=(256,1,1) block=(512,1,1) lds={K2_LDS}
.amdgcn_target "amdgcn-amd-amdhsa--gfx950"
.text
"""
    return hdr + gen_k0() + gen_k1() + gen_k2conv() + gen_k3()

if __name__ == "__main__":
    out = sys.argv[1] if len(sys.argv) > 1 else "cdna_kernels/" + NAME + ".s"
    open(out, "w").write(build_v1())
```

```python
import sys
from gen2 import *
base = build_v1()
empty = kernel("e0_kernel", "s_endpgm\n", 8)
def var(n_front, n_back, path):
    lines = base.split("\n")
    idx = [i for i, l in enumerate(lines) if l.startswith("; @launch")]
    e = "; @launch kernel=e0_kernel grid=(256,1,1) block=(64,1,1) lds=0"
    lines = lines[:idx[0]] + [e]*n_front + lines[idx[0]:idx[-1]+1] + [e]*n_back + lines[idx[-1]+1:]
    open(path, "w").write("\n".join(lines) + empty)
var(0, 4, "var_b4.s")
var(4, 0, "var_f4.s")
var(0, 8, "var_b8.s")
```

```python
import sys, struct, math
from base import *

NAME = "parallel_sum__ssm_conv_h3__dense_activation_silu__prompt"
WS_H, H_BYTES = 0, 2048*3584*2
H_SH = 16*96*8192
WS_KVT, KVT_BYTES = 0x1000000, 4 << 20
WS_Z, Z_BYTES = 0x1400000, 4 << 20
WS_ST, ST_BYTES = 0x1800000, 2048*16
WS_CS, CS_BYTES = 0x1810000, 16*3584*4
WS_FL, FL_BYTES = 0x1900000, 0x10000
F_EPOCH, F_CS, F_KV, F_H, F_Z = 0, 0x1000, 0x2000, 0x4000, 0x6000
WS_PART, PART_BYTES = 0x1A00000, 256*4*6144
WS_STAMP = 0x3000000
P_Q, P_K, P_V, P_SK, P_SSM, P_D, P_W1, P_W2, P_OUT, P_DBG, P_WS = 36, 38, 40, 42, 44, 46, 50, 52, 54, 56, 58
TAG = 94
MB4 = 4 << 20
W_BYTES = 1024*3584*2
LOG2E = 1.4426950408889634
SPIN_MAX = 50000

class Opt:
    stamps = False
    order = 2
    lead_mul = 8
    lead_d = 2
    pf_w2 = 1
    epi_prio = 2
    kvl = 2
    kvs = 4
    kv0 = 7
    kvn = 6
    stl = 7
    st0 = 9
    ssm = 11
    nt = 'nt'
    pf0 = 8
    pfw2g = 0
    pl_step = 10
    out_sc = ""
    noside = 0
    g2lead = 1
    epk = 1
    c0pos = 12
    stn = 4
    hprio1 = 0
    hprio2 = 0
    cprio = 0
    lst = 1
    hsc = 'sc1'
    fake_h = 0
    fake_w2 = 0
    nomf = 0
O = Opt()

def f32(x): return "0x%08x" % struct.unpack("<I", struct.pack("<f", x))[0]
def srd_s(d, p, size, off=0):
    a = f"s_add_u32 s{d}, s{p}, {off:#x}\ns_addc_u32 s{d+1}, s{p+1}, 0" if off else f"s_mov_b32 s{d}, s{p}\ns_mov_b32 s{d+1}, s{p+1}"
    return a + f"\ns_mov_b32 s{d+2}, {size:#x}\ns_mov_b32 s{d+3}, 0x20000"
def srd(A, d, p, size, off=0): A(srd_s(d, p, size, off))

def stamp(A, i):
    if O.stamps:
        A(f"s_memrealtime s[92:93]\ns_waitcnt lgkmcnt(0)\nv_writelane_b32 v255, s92, {i}")
def stamp_cyc(A, i):
    if O.stamps:
        A(f"s_memtime s[92:93]\ns_waitcnt lgkmcnt(0)\ns_sub_u32 s92, s92, s90\nv_writelane_b32 v255, s92, {i}")
def stamp_init(A):
    if O.stamps:
        A("v_mov_b32 v255, 0\ns_memtime s[90:91]")
        stamp(A, 0)
def stamp_end(A):
    if O.stamps:
        A("s_waitcnt vmcnt(0)")
        stamp(A, 14)
        stamp_cyc(A, 15)
        srd(A, 8, P_WS, 0x80000, WS_STAMP)
        A("""s_lshl_b32 s60, s2, 3
        s_add_u32 s60, s60, s3
        s_lshl_b32 s60, s60, 8
        v_mbcnt_lo_u32_b32 v0, -1, 0
        v_mbcnt_hi_u32_b32 v0, -1, v0
        v_lshlrev_b32 v0, 2, v0
        buffer_store_dword v255, v0, s[8:11], s60 offen""")

SLOT = 45056
XPART = 16384
SLOTS = [0, 70656, 115712]
CREG = 20224
CBASE = 79872
L_CS = 160768
L_ST = L_CS + 1024
LDS_TOTAL = L_ST + 2048
HA0, HA1, UA, UB = 0, 4352, 8704, 8704 + 5760
E_OFF, ZT_OFF, XT_OFF = 0, 8192, 8192 + 4096
FS = 28
HB = CBASE
VT = 248
PERM = 86

def get_tag_s():
    a = 6364136223846793005; c = 1442695040888963407
    return f"""s_mul_i32 s{TAG}, s96, {a & 0xffffffff:#x}
    s_mul_hi_u32 s{TAG+1}, s96, {a & 0xffffffff:#x}
    s_mul_i32 s60, s96, {a >> 32:#x}
    s_add_u32 s{TAG+1}, s{TAG+1}, s60
    s_mul_i32 s60, s97, {a & 0xffffffff:#x}
    s_add_u32 s{TAG+1}, s{TAG+1}, s60
    s_add_u32 s{TAG}, s{TAG}, {c & 0xffffffff:#x}
    s_addc_u32 s{TAG+1}, s{TAG+1}, {c >> 32:#x}"""

def set_flag_s(soff):
    return f"""v_mov_b32 v{VT}, s{TAG}
    v_mov_b32 v{VT+1}, s{TAG+1}
    s_mov_b64 exec, 1
    buffer_store_dwordx2 {vr(VT,2)}, off, {sr(FS,4)}, {soff} sc1
    s_mov_b64 exec, -1"""

def spin_max(): return 1 if O.noside else SPIN_MAX

def poll_addr_s(areg, nflags, lane):
    if nflags < 64: return f"v_min_u32 v{areg}, {nflags-1}, {lane}\nv_lshlrev_b32 v{areg}, 3, v{areg}"
    return f"v_lshlrev_b32 v{areg}, 3, {lane}"
def recheck_s(A, load, cmp, sleep):
    lp = A.label("rp"); dn = A.label("rpok")
    return f"""{cmp}
    s_cbranch_vccz {dn}
    s_mov_b32 s62, {spin_max()}
    {lp}:
    s_sleep {sleep}
    {load}
    s_waitcnt vmcnt(0)
    {cmp}
    s_cbranch_vccz {dn}
    s_sub_u32 s62, s62, 1
    s_cmp_lg_u32 s62, 0
    s_cbranch_scc1 {lp}
    {dn}:"""

class Prog:
    def __init__(self, A):
        self.A = A; self.q = []; self.done = 0
    def emit(self, it):
        if isinstance(it, str): self.A(it)
        elif it[0] == "vm":
            self.A(it[2]); self.q += [it[1]]*(it[3] if len(it) > 3 else 1)
        elif it[0] == "wait":
            idx = max(i for i, t in enumerate(self.q) if t == it[1])
            if idx >= self.done:
                n = len(self.q) - 1 - idx
                assert n <= 63
                self.A(f"s_waitcnt vmcnt({n})")
                self.done = idx + 1
        elif it[0] == "waitolder":
            idx = self.q.index(it[1])
            self.A(f"s_waitcnt vmcnt({len(self.q) - idx})")
            self.done = max(self.done, idx)
    def merge(self, main, side):
        if not main:
            for s in side: self.emit(s)
            return
        per = len(side) / len(main); acc = 0.0; k = 0
        for m in main:
            self.emit(m); acc += per
            while k < len(side) and k < acc - 1e-9:
                self.emit(side[k]); k += 1
        while k < len(side): self.emit(side[k]); k += 1

def split(items, n):
    per = math.ceil(len(items) / n)
    return [items[i*per:(i+1)*per] for i in range(n)]
def lines(txt): return [l.strip() for l in txt.split("\n") if l.strip()]

CU_, CH_ = 216, 232
def conv_load_h_items():
    return [srd_s(24, P_SSM, MB4), "v_lshlrev_b32 v2, 4, v1"] + \
           [("vm", "ssm", f"buffer_load_dwordx4 {vr(CH_+4*j,4)}, v2, s[24:27], s69 offen offset:{j*1024} {O.nt}") for j in range(4)]
def conv_load_u_items():
    return [srd_s(24, P_WS, KVT_BYTES, WS_KVT), "s_lshl_b32 s64, s2, 14\ns_lshl_b32 s61, s33, 4\ns_add_u32 s64, s64, s61\nv_lshlrev_b32 v2, 6, v1"] + \
           [("vm", "u", f"buffer_load_dwordx4 {vr(CU_+4*j,4)}, v2, s[24:27], s64 offen sc1\ns_add_u32 s64, s64, 4096") for j in range(4)]

VX, VW = 4, 8
def helper_head(A):
    hw = "s33"
    A(f"""s_setprio {O.hprio1}
    s_sub_u32 s33, s3, 4
    s_and_b32 s32, s3, 1""")
    srd(A, 8, P_Q, MB4)
    srd(A, 12, P_W1, W_BYTES)
    A(f"""v_lshrrev_b32 v2, 3, v1
    v_lshrrev_b32 v3, 4, v1
    v_xor_b32 v3, v3, v1
    v_and_b32 v3, 7, v3
    v_lshlrev_b32 v3, 4, v3
    v_lshl_add_u32 v3, v2, 11, v3
    s_lshl_b32 s60, s4, 18
    s_lshl_b32 s61, {hw}, 16
    s_add_u32 s60, s60, s61
    v_add_u32 v{VX}, s60, v3
    v_xor_b32 v3, 64, v{VX}
    v_add_u32 v{VX+1}, {16384-1024}, v3
    v_add_u32 v{VX+2}, {2*(16384-1024)}, v{VX}
    v_add_u32 v{VX+3}, {3*(16384-1024)}, v3
    s_lshl_b32 s70, {hw}, 12
    s_mul_i32 s71, {hw}, 7168
    s_add_u32 s71, s71, {XPART}
    s_and_b32 s63, s{PERM}, 15
    s_lshl_b32 s72, s63, 7
    s_mul_i32 s73, s63, {64*7168}
    s_mov_b32 m0, s70
    s_mul_i32 s60, s5, 448""")
    for i in range(4): A(f"buffer_load_dwordx4 v{VX+i}, s[8:11], s72 offen offset:{i*1024} lds")
    A(f"""s_mul_i32 s61, {hw}, {16*7168}
    s_add_u32 s60, s60, s61
    s_movk_i32 s62, 6720
    v_lshl_add_u32 v15, v1, 4, s60""")
    for i in range(7):
        A(f"""v_add_u32 v2, {64*i}, v1
        v_mul_u32_u24 v2, 2341, v2
        v_lshrrev_b32 v2, 16, v2
        v_mad_u32_u24 v3, v2, s62, v15
        v_and_b32 v2, 8, v2
        v_lshlrev_b32 v2, 2, v2""")
        if i < 4: A(f"v_xor_b32 v{VW+i}, v2, v3")
        else: A(f"v_xor_b32 v3, v2, v3\nv_add_u32 v{VW+i}, 4096, v3")
        if i % 4 == 0: A(f"s_add_u32 m0, s71, {(i//4)*4096}\ns_nop 0")
        A(f"buffer_load_dwordx4 v{VW+i}, s[12:15], s73 offen offset:{(i%4)*1024} lds")
    A(f"""s_lshr_b32 s60, s2, 3
    s_lshl_b32 s60, s60, 5
    s_lshl_b32 s61, s33, 3
    s_add_u32 s60, s60, s61
    s_and_b32 s61, s2, 7
    s_add_u32 s68, s60, s61
    s_lshl_b32 s69, s68, 12
    s_lshl_b32 s60, s68, 1
    s_and_b32 s60, s60, 0xfffffffc
    s_load_dword s67, s[{P_D}:{P_D+1}], s60
    s_lshl_b32 s60, s2, 2
    s_add_u32 s60, s60, {hw}
    s_mul_i32 s60, s60, 7168
    s_add_u32 s80, s{P_W2}, s60
    s_addc_u32 s81, s{P_W2+1}, 0""")

def dma_items(j):
    sl = SLOTS[j % 3]
    reg = PERM + (j // 8)
    it = []
    for i in range(4):
        pre = f"s_bfe_u32 s63, s{reg}, {(4 << 16) | (4*(j % 8)):#x}\ns_add_u32 m0, s70, {sl}\ns_lshl_b32 s72, s63, 7\n" if i == 0 else ""
        post = f"\ns_mul_i32 s73, s63, {64*7168}" if i == 0 else ""
        it.append(("vm", f"d{j}", pre + f"buffer_load_dwordx4 v{VX+i}, s[8:11], s72 offen offset:{i*1024} lds" + post))
    for i in range(7):
        pre = f"s_add_u32 m0, s71, {sl + (i//4)*4096}\ns_nop 0\n" if i % 4 == 0 else ""
        it.append(("vm", f"d{j}", pre + f"buffer_load_dwordx4 v{VW+i}, s[12:15], s73 offen offset:{(i%4)*1024} lds"))
    return it

def helper_phase1(A, kind):
    sw = "s32"
    P = Prog(A); P.q = ["d0"]*11
    S = {j: [] for j in range(1, 18)}
    if kind == "B":
        TR, KR, VR = 16, 32, 76
        TW, KU, VU, OUT = 108, 116, 138, 154
        so = ["0", "s64", "s65", "s66"]
        S[1] += [srd_s(20, P_WS, KVT_BYTES, WS_KVT), srd_s(16, P_K, MB4), srd_s(24, P_V, MB4), srd_s(76, P_SK, 8192)]
        S[1] += lines(f"""s_and_b32 s75, s2, 7
        s_lshl_b32 s75, s75, 1
        s_lshr_b32 s60, s2, 7
        s_add_u32 s75, s75, s60
        s_bfe_u32 s74, s2, 0x40003
        s_lshl_b32 s60, s75, 4
        s_lshl_b32 s61, {sw}, 3
        s_add_u32 s60, s60, s61
        v_lshrrev_b32 v2, 3, v1
        v_add_u32 v2, s60, v2
        s_lshl_b32 s62, s74, 3
        v_and_b32 v3, 7, v1
        v_add_u32 v172, s62, v3
        v_lshlrev_b32 v173, 4, v172
        v_lshl_add_u32 v173, v2, 14, v173
        v_subrev_u32 v174, 6144, v173
        v_lshlrev_b32 v172, 6, v172
        s_movk_i32 s64, 4096
        s_movk_i32 s65, 8192
        s_movk_i32 s66, 12288
        v_sub_u32 v175, 255, v2
        v_lshlrev_b32 v175, 6, v175
        v_and_b32 v2, 3, v3
        v_lshl_add_u32 v175, v2, 4, v175
        v_lshrrev_b32 v2, 2, v3
        v_lshl_add_u32 v175, v2, 17, v175
        s_lshl_b32 s61, s74, 18
        v_add_u32 v175, s61, v175""")
        ld = [f"buffer_load_dwordx4 {vr(TR+4*j,4)}, v172, s[76:79], 0 offen offset:{16*j}" for j in range(4)]
        ld += [f"buffer_load_dwordx4 {vr(KR+4*r,4)}, v174, s[16:19], {so[r//2]} offen offset:{(r%2)*2048} {O.nt}" for r in range(3)]
        ld += [f"buffer_load_dwordx4 {vr(KR+12+4*r,4)}, v173, s[16:19], {so[r//2]} offen offset:{(r%2)*2048} {O.nt}" for r in range(8)]
        ld += [f"buffer_load_dwordx4 {vr(VR+4*r,4)}, v173, s[24:27], {so[r//2]} offen offset:{(r%2)*2048} {O.nt}" for r in range(8)]
        for c in range(O.kvs):
            S[O.kvl + c].append(("tail", [f"s_cmp_lg_u32 s35, {c}\ns_cbranch_scc1 L_kvskip{c}\n" + "\n".join(ld) + f"\nL_kvskip{c}:"]))
        assert O.kv0 >= O.kvl + O.kvs + 1
        S[1].insert(0, f"s_lshr_b32 s35, s2, 3\ns_and_b32 s35, s35, {O.kvs-1}")
        calc = [("waitolder", f"d{O.kvl + O.kvs}")]
        for e in range(4):
            for j in range(4):
                for c in range(2):
                    src = TR + 4*e + 2*c + j//2
                    calc.append(f"v_lshlrev_b32 v{TW+2*j+c}, 16, v{src}" if j % 2 == 0 else f"v_and_b32 v{TW+2*j+c}, 0xffff0000, v{src}")
            for r in range(11): calc += [f"v_lshlrev_b32 v{KU+2*r}, 16, v{KR+4*r+e}", f"v_and_b32 v{KU+2*r+1}, 0xffff0000, v{KR+4*r+e}"]
            for r in range(8): calc += [f"v_lshlrev_b32 v{VU+2*r}, 16, v{VR+4*r+e}", f"v_and_b32 v{VU+2*r+1}, 0xffff0000, v{VR+4*r+e}"]
            for r in range(8):
                t = 176 + 2*(r % 2)
                for c in range(2): calc.append(f"v_mul_f32 v{t+c}, v{KU+2*r+c}, v{TW+6+c}")
                for j in (2, 1, 0):
                    for c in range(2): calc.append(f"v_fmac_f32 v{t+c}, v{KU+2*(r+3-j)+c}, v{TW+2*j+c}")
                for c in range(2): calc.append(f"v_mul_f32 v{VU+2*r+c}, v{t+c}, v{VU+2*r+c}")
            o = OUT + (e % 2)*8
            for c in range(2):
                for q in range(4): calc.append(f"v_cvt_pk_bf16_f32 v{o+4*c+q}, v{VU+2*(7-2*q)+c}, v{VU+2*(6-2*q)+c}")
            for c in range(2):
                calc.append(("vm", "kvst", f"s_mov_b32 s60, {(2*e+c)*16384}\nbuffer_store_dwordx4 {vr(o+4*c,4)}, v175, s[20:23], s60 offen sc1"))
        for k, seg in enumerate(split(calc, O.kvn)): S[O.kv0 + k] += seg
        S[O.kv0 + O.kvn + 1] += [("wait", "kvst"), ("vm", "fl", f"""s_lshl_b32 s61, s74, 8
        s_lshl_b32 s60, s75, 4
        s_add_u32 s61, s61, s60
        s_lshl_b32 s60, {sw}, 3
        s_add_u32 s61, s61, s60
        s_add_u32 s61, s61, {F_KV}
        """ + set_flag_s("s61"))]
    else:
        SR, X = 16, 48
        S[1] += [srd_s(16, P_WS, ST_BYTES, WS_ST), srd_s(20, P_WS, CS_BYTES, WS_CS)]
        S[O.stl] += lines(f"""s_lshl_b32 s60, s2, 3
        s_lshl_b32 s61, {sw}, 2
        s_add_u32 s60, s60, s61
        v_lshrrev_b32 v2, 4, v1
        v_add_u32 v2, s60, v2
        v_and_b32 v3, 15, v1
        v_lshlrev_b32 v3, 4, v3
        v_lshl_add_u32 v120, v2, 11, v3""")
        S[O.stl].append(("tail", [("vm", "st", f"buffer_load_dwordx4 {vr(SR+4*j,4)}, v120, s[8:11], 0 offen offset:{j*256}") for j in range(8)]))
        def rowsum(reg):
            out = ["v_add_f32 v112, v112, v113", "v_add_f32 v114, v114, v115", f"v_add_f32 v{reg}, v112, v114"]
            out += [f"s_nop 1\nv_add_f32_dpp v{reg}, v{reg}, v{reg} row_ror:{r} row_mask:0xf bank_mask:0xf" for r in (8, 4, 2, 1)]
            return out + [f"v_mul_f32 v{reg}, {f32(1/1024)}, v{reg}"]
        c = [("wait", "st")]
        for j in range(32): c += [f"v_lshlrev_b32 v{X+2*j}, 16, v{SR+j}", f"v_and_b32 v{X+2*j+1}, 0xffff0000, v{SR+j}"]
        for q in range(4): c.append(f"v_add_f32 v{112+q}, v{X+q}, v{X+4+q}")
        for j in range(8, 64): c.append(f"v_add_f32 v{112+j%4}, v{112+j%4}, v{X+j}")
        c += rowsum(116)
        for j in range(64):
            c.append(f"v_sub_f32 v{X+j}, v{X+j}, v116")
        for q in range(4): c.append(f"v_mul_f32 v{112+q}, v{X+q}, v{X+q}")
        for j in range(4, 64): c.append(f"v_fmac_f32 v{112+j%4}, v{X+j}, v{X+j}")
        c += rowsum(117)
        c += lines(f"""v_cvt_pk_bf16_f32 v112, v116, v117
        v_lshlrev_b32 v116, 16, v112
        v_and_b32 v117, 0xffff0000, v112
        v_add_f32 v117, {f32(1e-5)}, v117
        v_cvt_pk_bf16_f32 v117, v117, v117
        v_lshlrev_b32 v117, 16, v117
        v_sqrt_f32 v117, v117
        v_mov_b32 v118, s{TAG}
        v_cvt_pk_bf16_f32 v117, v117, v117
        v_lshlrev_b32 v117, 16, v117
        v_mov_b32 v119, s{TAG+1}
        v_and_b32 v2, 48, v1""")
        c.append(("vm", "stst", f"""s_lshl_b32 s60, s2, 7
        s_lshl_b32 s61, {sw}, 6
        s_add_u32 s60, s60, s61
        s_mov_b32 exec_lo, 0x00010001
        s_mov_b32 exec_hi, 0x00010001
        buffer_store_dwordx4 v[116:119], v2, s[16:19], s60 offen sc1
        s_mov_b64 exec, -1"""))
        for k, seg in enumerate(split(c, O.stn)): S[O.st0 + k] += seg
        lk = f"buffer_load_dwordx2 v[16:17], v122, {sr(FS,4)}, s74 offen sc1"
        lc = f"buffer_load_dwordx2 v[18:19], v122, {sr(FS,4)}, s75 offen sc1"
        S[13] += [poll_addr_s(122, 32, "v1"),
                  f"s_lshr_b32 s74, s2, 4\ns_lshl_b32 s74, s74, 8\ns_add_u32 s74, s74, {F_KV}\ns_lshl_b32 s75, s5, 8\ns_add_u32 s75, s75, {F_CS}"]
        ls = f"buffer_load_dwordx4 v[24:27], v124, s[16:19], s66 offen sc1"
        g = lines(f"""v_and_b32 v2, 31, v1
        v_min_u32 v123, 27, v2
        v_lshrrev_b32 v3, 5, v1
        s_mov_b32 s60, {8*3584*4}
        v_mul_lo_u32 v3, v3, s60
        v_lshl_add_u32 v125, v123, 4, v3
        s_mul_i32 s65, s5, {224*4}
        s_mul_i32 s61, {sw}, {112*4}
        s_add_u32 s65, s65, s61
        s_lshl_b32 s66, s4, 11
        s_lshl_b32 s60, {sw}, 10
        s_add_u32 s66, s66, s60
        v_lshlrev_b32 v124, 4, v1""")
        S[14] += g + [("tail", [("vm", "pc", lc)])]
        S[15] += [("tail", [("wait", "pc"), recheck_s(A, lc, f"v_cmp_ne_u64 vcc, {sr(TAG,2)}, v[18:19]", 4)] +
                      [("vm", "ga", f"buffer_load_dwordx4 {vr(32+4*j,4)}, v125, s[20:23], s65 offen sc1\ns_add_u32 s65, s65, {3584*4}") for j in range(8)])]
        S[16] += [("vm", "ga", ls)]
        f = [("wait", "ga"), recheck_s(A, ls, f"v_cmp_ne_u64 vcc, {sr(TAG,2)}, v[26:27]", 8), "v_rcp_f32 v27, v25"]
        for j in range(1, 8): f += [f"v_add_f32 v{32+q}, v{32+q}, v{32+4*j+q}" for q in range(4)]
        f += [f"v_mov_b32 v{36+q}, v{32+q}" for q in range(4)] + [f"v_mul_f32 v26, {f32(-LOG2E)}, v27\ns_nop 0"]
        f += [f"v_permlane32_swap_b32 v{32+q}, v{36+q}" for q in range(4)]
        f += lines(f"""s_mul_i32 s61, {sw}, {112*4}
        s_add_u32 s61, s61, {L_CS}
        v_add_f32 v32, v32, v36
        v_add_f32 v33, v33, v37
        v_add_f32 v34, v34, v38
        v_add_f32 v35, v35, v39
        v_lshl_add_u32 v123, v123, 4, s61
        s_lshl_b32 s60, {sw}, 10
        s_add_u32 s60, s60, {L_ST}
        v_add_u32 v124, s60, v124
        ds_write_b128 v123, v[32:35]
        ds_write_b128 v124, v[24:27]""")
        S[17] += f
    if O.noside:
        S = {j: [] for j in range(1, 18)}
    pf = {j: [] for j in range(1, 17)}
    if O.pf_w2:
        for q in range(4*(16 - O.pf0)): pf[O.pf0 + q//4].append(f"s_load_dwordx2 s[82:83], s[80:81], {q*128+60}")
    if O.ssm < 16: S[O.ssm].append(("tail", conv_load_h_items()))
    for j in range(1, 16):
        body = pf[j] + [x for x in S[j] if not (isinstance(x, tuple) and x[0] == "tail")]
        tail = [y for x in S[j] if isinstance(x, tuple) and x[0] == "tail" for y in x[1]]
        P.merge(dma_items(j), body)
        for x in tail: P.emit(x)
        if j == 1: A("s_waitcnt lgkmcnt(0)\n" + get_tag_s())
        if kind == "B" and not O.noside and O.kvl <= j <= O.kvl + O.kvs:
            idx = max(i for i, t in enumerate(P.q) if t == f"d{j-1}")
            A(f"s_add_u32 s60, s35, {(1 - (j - O.kvl)) & 0xffffffff}\ns_cmp_gt_u32 s60, 1\ns_waitcnt vmcnt({len(P.q) - 1 - idx + 23})\ns_cbranch_scc0 L_kvw{j}")
            P.emit(("wait", f"d{j-1}"))
            A(f"L_kvw{j}:")
        else:
            P.emit(("wait", f"d{j-1}"))
        A("s_barrier")
        if kind == "B" and O.lst: stamp(A, 16 + j - 1)
    if O.ssm == 16:
        for x in conv_load_h_items(): P.emit(x)
    for x in S[16]: P.emit(x)
    P.emit(("wait", "d15"))
    A("s_barrier")
    for x in S[17]: P.emit(x)

RB = [0, 32768, CBASE, CBASE + 32768]
def helper_tail(A):
    cw = "s33"
    A("L_conv_start:")
    stamp(A, 5)
    U, H = CU_, CH_
    B2, H0 = 48, 64
    AA, BA = 14, 15
    ACC = 16; SA = [48, 96]; SB = [80, 128]; KV = 144
    VD1, VD2 = 200, 204
    P = Prog(A)
    lk = f"buffer_load_dwordx2 v[208:209], v210, {sr(FS,4)}, s74 offen sc1"
    A(f"""s_lshr_b32 s74, s2, 4
    s_lshl_b32 s74, s74, 8
    s_add_u32 s74, s74, {F_KV}
    {poll_addr_s(210, 32, "v1")}
    {lk}
    v_lshlrev_b32 v3, 4, v1
    s_mul_i32 s70, {cw}, {CREG}
    s_add_u32 s70, s70, {CBASE}
    v_add_u32 v4, s70, v3
    v_lshrrev_b32 v7, 4, v1
    v_lshl_add_u32 v5, v7, 5, v4
    v_mov_b32 v212, 0
    v_mov_b32 v213, 0
    v_mov_b32 v214, 0
    v_mov_b32 v215, 0""")
    for off in (HA0, HA1, UA + 16*288 - 32, UA + 20*288 - 1024, UB + 16*288 - 32, UB + 20*288 - 1024):
        A(f"ds_write_b128 v4, v[212:215] offset:{off}")
    A("s_waitcnt lgkmcnt(6)\ns_barrier")
    stamp(A, 6)
    A("s_waitcnt vmcnt(0)")
    A(recheck_s(A, lk, f"v_cmp_ne_u64 vcc, {sr(TAG,2)}, v[208:209]", 2))
    for x in conv_load_u_items(): P.emit(x)
    for j in range(4):
        A(f"ds_write_b128 v4, {vr(H+4*j,4)} offset:{HA1 + 256 + j*1024}")
        A(f"v_mov_b32_dpp v12, v{H+4*j+3} wave_shr:1 row_mask:0xf bank_mask:0xf bound_ctrl:0")
        if j > 0: A(f"v_readlane_b32 s61, v{H+4*j-1}, 63\ns_nop 3\nv_writelane_b32 v12, s61, 0")
        A(f"v_alignbit_b32 v{H0+4*j}, v{H+4*j}, v12, 16")
        for q in range(1, 4): A(f"v_alignbit_b32 v{H0+4*j+q}, v{H+4*j+q}, v{H+4*j+q-1}, 16")
        A(f"ds_write_b128 v4, {vr(H0+4*j,4)} offset:{HA0 + 256 + j*1024}")
    srd(A, 16, P_WS, Z_BYTES, WS_Z)
    srd(A, 12, P_W2, W_BYTES)
    srd(A, 8, P_WS, H_BYTES, WS_H)
    A(f"""v_and_b32 v6, 15, v1
    v_lshlrev_b32 v8, 1, v7
    v_xor_b32 v9, v8, v6
    s_and_b32 s76, s5, 8
    v_xor_b32 v9, s76, v9
    v_lshlrev_b32 v9, 4, v9
    v_lshl_add_u32 v9, v7, 11, v9
    s_and_b32 s72, s5, 7
    s_lshl_b32 s62, s72, 8
    s_lshl_b32 s61, s32, 15
    s_add_u32 s62, s62, s61
    v_add_u32 v{VD1}, s62, v9
    v_xor_b32 v9, 128, v{VD1}
    v_add_u32 v{VD1+1}, {8192-1024}, v9
    v_add_u32 v{VD1+2}, {2*(8192-1024)}, v{VD1}
    v_add_u32 v{VD1+3}, {3*(8192-1024)}, v9
    s_lshr_b32 s73, {cw}, 1
    s_lshl_b32 s77, {cw}, 12
    s_lshl_b32 s60, s4, 4
    s_add_u32 s79, s60, s76
    s_mul_i32 s79, s79, {6*8192}
    s_add_u32 s79, s79, s77
    s_lshl_b32 s71, s4, 17
    s_lshl_b32 s60, s32, 12
    s_add_u32 s71, s71, s60
    s_add_u32 s71, s71, {H_SH}
    s_lshl_b32 s78, {cw}, 11
    s_lshl_b32 s60, s76, 4
    s_add_u32 s65, s62, s60
    v_xor_b32 v8, v8, v1
    v_and_b32 v8, 7, v8
    v_lshlrev_b32 v8, 4, v8
    v_lshrrev_b32 v13, 3, v1
    v_lshl_add_u32 v8, v13, 11, v8
    v_add_u32 v{VD2}, s65, v8
    v_add_u32 v{VD2+1}, {16384-1024}, v{VD2}
    v_add_u32 v{AA}, v6, v7
    v_lshl_add_u32 v{AA}, v{AA}, 4, s70
    v_bfe_u32 v8, v1, 2, 2
    v_sub_u32 v9, 3, v8
    v_mul_u32_u24 v9, 288, v9
    v_add_u32 v9, s70, v9
    v_and_b32 v12, 3, v1
    v_lshlrev_b32 v10, 6, v7
    v_lshl_add_u32 v206, v8, 8, v10
    v_lshl_add_u32 v206, v12, 4, v206
    v_lshl_add_u32 v10, v12, 2, v10
    v_sub_u32 v207, v9, v10
    v_lshl_add_u32 v9, v7, 4, v9
    v_and_b32 v10, 1, v1
    v_sub_u32 v10, 1, v10
    v_mul_u32_u24 v10, 5760, v10
    v_bfe_u32 v11, v1, 1, 1
    v_sub_u32 v11, 1, v11
    v_lshlrev_b32 v11, 3, v11
    v_add3_u32 v{BA}, v9, v10, v11
    s_lshr_b32 s60, s67, 16
    s_and_b32 s61, s68, 1
    s_cmp_eq_u32 s61, 1
    s_cselect_b32 s67, s60, s67
    s_lshl_b32 s67, s67, 16""")
    for i in range(32): A(f"v_mov_b32 v{ACC+i}, 0")
    P.emit(("wait", "u"))
    for j in range(4):
        A(f"ds_write_b128 v5, {vr(U+4*j,4)} offset:{UA + j*1152}")
        for q in range(3): A(f"v_mov_b32 v{B2+4*j+q}, v{U+4*j+q+1}")
        A(f"v_mov_b32_dpp v{B2+4*j+3}, v{U+4*j} wave_shl:1 row_mask:0xf bank_mask:0xf bound_ctrl:0")
        if j < 3: A(f"v_readlane_b32 s60, v{U+4*j+4}, 0\ns_nop 3\nv_writelane_b32 v{B2+4*j+3}, s60, 63")
        A(f"ds_write_b128 v5, {vr(B2+4*j,4)} offset:{UB + j*1152}")
    A("s_mov_b32 exec_lo, 0x00010001\ns_mov_b32 exec_hi, 0x00010001")
    for j in range(1, 4):
        A(f"ds_write_b128 v5, {vr(U+4*j,4)} offset:{UA + j*1152 - 32}")
        A(f"ds_write_b128 v5, {vr(B2+4*j,4)} offset:{UB + j*1152 - 32}")
    A(f"""s_mov_b32 exec_lo, 0x00010000
    ds_write_b128 v5, {vr(U,4)} offset:{UA - 32}
    ds_write_b128 v5, {vr(B2,4)} offset:{UB - 32}
    s_mov_b64 exec, -1
    s_waitcnt lgkmcnt(0)""")
    def stsel(j):
        return f"""s_bfe_u32 s60, s{84 + (j % 12)//6}, {(5 << 16) | (5*(j % 6)):#x}
            s_add_u32 s60, s60, {12*(j//12)}
            s_mul_i32 s61, s60, 43
            s_lshr_b32 s61, s61, 7
            s_mul_i32 s63, s61, 3
            s_sub_u32 s60, s60, s63
            s_add_u32 s61, s61, s72
            s_and_b32 s61, s61, 7
            """
    def dma2(j, w=True, h=True, split_pre=False):
        it = []
        if j < 24:
            pre = stsel(j)
            if h: pre += f"""s_mul_i32 s74, s61, 3
            s_add_u32 s74, s74, s60
            {"s_and_b32 s74, s74, 3" if O.fake_h else ""}
            s_lshl_b32 s74, s74, 14
            s_add_u32 s74, s74, s79
            """
            if w: pre += f"""s_lshl_b32 s60, s60, 1
            s_add_u32 s60, s60, s73
            s_add_u32 s61, s61, s76
            s_mul_i32 s61, s61, 7
            s_cmp_ge_u32 s60, 3
            s_addc_u32 s60, s60, s61
            {"s_and_b32 s60, s60, 7" if O.fake_w2 else ""}
            s_lshl_b32 s75, s60, 16
            """
            wl = [(f"s_add_u32 m0, s77, {RB[j % 4]}\ns_nop 0\n" if i == 0 else "") + f"buffer_load_dwordx4 v{VD1+i}, s[12:15], s75 offen offset:{i*1024} lds" for i in range(4)]
        else:
            pre = f"""s_add_u32 s60, s5, s73
            s_add_u32 s60, s60, {2*(j-24)}
            s_and_b32 s60, s60, 15
            s_lshl_b32 s74, s60, 13
            s_add_u32 s74, s74, s71
            s_mul_i32 s60, s60, 7
            s_add_u32 s60, s60, 3
            s_lshl_b32 s75, s60, 16
            """
            wl = [(f"s_add_u32 m0, s78, {RB[j % 4]}\ns_nop 0\n" if i == 0 else "") + f"buffer_load_dwordx4 v{VD2+i}, s[12:15], s75 offen offset:{i*1024} lds" for i in range(2)]
        hl = [(f"s_add_u32 m0, s77, {RB[j % 4] + 16384}\ns_nop 0\n" if i == 0 else "") + f"buffer_load_dwordx4 v3, s[8:11], s74 offen offset:{i*1024} sc1 lds" for i in range(4)]
        l = (hl if h else []) + (wl if w else [])
        if split_pre: return pre, [("vm", f"w{j}", x) for x in l]
        l[0] = pre + l[0]
        return [("vm", f"w{j}", x) for x in l]
    def reads(p, mm, nxt):
        ar = {(a, rho): f"ds_read_b128 {vr(SA[p]+(a*2+rho)*4,4)}, v{AA} offset:{(HA0, HA1)[rho] + 16 + 64*(mm + 4*nxt + 16*a)}"
              for a in range(4) for rho in range(2)}
        br = {e: [f"ds_read_b64 {vr(SB[p]+e*4+2*h,2)}, v{BA} offset:{UA + (12 - 4*e + nxt)*288 + 64*mm + 8*h}" for h in range(2)] for e in range(4)}
        return br[0] + [ar[(0,0)], ar[(0,1)]] + br[1] + br[2] + br[3] + [ar[(a, r)] for a in (1,2,3) for r in range(2)]
    def mfmas(p):
        out = []
        for a in range(4):
            for c in range(a, 4):
                for rho in range(2):
                    d = vr(ACC+(c*2+rho)*4, 4)
                    out.append(f"v_mfma_f32_16x16x32_bf16 {d}, {vr(SA[p]+(a*2+rho)*4,4)}, {vr(SB[p]+(c-a)*4,4)}, {d}")
        return out
    for c in range(4):
        for r in range(4):
            A(f"ds_read_b32 v{KV+c*4+r}, v207 offset:{UA + (12-4*c)*288 + 252 - 16*r}")
    for j in range(2):
        for x in dma2(j, h=False): P.emit(x)
    A("s_waitcnt lgkmcnt(0)")
    for x in reads(0, 0, 0): A(x)
    A(dma2(2, split_pre=True)[0])
    stamp(A, 11)
    A("s_barrier")
    stamp(A, 7)
    A(f"s_setprio {O.cprio}\ns_mov_b32 s64, 0\n.p2align 3\nL_conv_loop:")
    for mm in range(4):
        p = mm % 2
        A("s_waitcnt lgkmcnt(0)\ns_nop 0")
        if mm == 3: A("s_cmp_eq_u32 s64, 3\ns_cbranch_scc1 L_conv_last")
        for x in interleave(mfmas(p), reads(1-p, (mm+1) % 4, 1 if mm == 3 else 0)): A(x)
    A(f"""v_add_u32 v{AA}, 256, v{AA}
    v_add_u32 v{BA}, 288, v{BA}
    s_add_u32 s64, s64, 1
    s_branch L_conv_loop
    L_conv_last:
    s_waitcnt vmcnt(0)""")
    P.done = len(P.q)
    ml = mfmas(1)
    for x in ml[:O.c0pos]: A(x)
    A("s_barrier")
    for x in ml[O.c0pos:]: A(x)
    stamp(A, 8)
    A(f"s_setprio {O.hprio2}")
    S = {k: [] for k in range(0, 33)}
    zc = []
    for c in range(4):
        for r in range(4):
            y0, y1, kv = ACC+(c*2)*4+r, ACC+(c*2+1)*4+r, KV+c*4+r
            zc += lines(f"""v_and_b32 v10, 0xffff0000, v{kv}
            v_lshlrev_b32 v11, 16, v{kv}
            v_fmac_f32 v{y0}, s67, v10
            v_fmac_f32 v{y1}, s67, v11
            v_cvt_pk_bf16_f32 v{kv}, v{y0}, v{y1}""")
        zc.append(("vm", "zst", f"buffer_store_dwordx4 {vr(KV+4*c,4)}, v206, s[16:19], s69 offen offset:{c*1024} sc1"))
    S[0] += ["s_nop 7"] + zc[:42]; S[1] += zc[42:]
    S[4] += [("wait", "zst"), ("vm", "fl", f"s_lshl_b32 s62, s68, 3\ns_add_u32 s62, s62, {F_Z}\n" + set_flag_s("s62"))]
    S[1] += [srd_s(20, P_Q, MB4)] + lines(f"""s_lshl_b32 s65, s72, 2
    s_lshr_b32 s60, s76, 2
    s_add_u32 s65, s65, s60
    s_add_u32 s65, s65, s73
    s_lshl_b32 s64, s4, 7
    s_lshl_b32 s61, s32, 6
    s_add_u32 s64, s64, s61
    s_lshl_b32 s66, s64, 11
    s_lshl_b32 s60, s65, 6
    s_add_u32 s66, s66, s60
    s_mul_i32 s70, s73, 79872
    s_lshl_b32 s60, s32, 12
    s_add_u32 s70, s70, s60
    s_add_u32 s70, s70, 65536""")
    S[2] += lines(f"""v_lshrrev_b32 v4, 3, v1
    v_bfe_u32 v30, v1, 2, 2
    v_lshlrev_b32 v30, 1, v30
    v_and_b32 v31, 1, v1
    v_add_u32 v30, v30, v31
    v_and_b32 v31, 2, v1
    v_lshl_add_u32 v30, v31, 2, v30
    v_lshrrev_b32 v2, 2, v1
    v_and_b32 v5, 3, v1
    v_lshlrev_b32 v9, 4, v5
    v_lshl_add_u32 v16, v2, 11, v9
    v_add_u32 v17, {32768-1024}, v16
    v_add_u32 v18, {2*(32768-1024)}, v16
    v_add_u32 v19, {3*(32768-1024)}, v16
    v_lshlrev_b32 v12, 3, v7
    v_lshl_add_u32 v12, v30, 6, v12
    v_add_u32 v12, s70, v12""")
    S[3] += [("tail", [("vm", "x", (f"s_mov_b32 m0, s70\ns_nop 0\n" if j == 0 else "") + f"buffer_load_dwordx4 v{16+j}, s[20:23], s66 offen offset:{j*1024} lds") for j in range(4)])]
    S[6] += [("wait", "x")] + [f"ds_read_b64 {vr(80+2*(T*4+mt),2)}, v12 offset:{mt*1024 + T*32}" for T in range(2) for mt in range(4)]
    S[7] += [f"s_lshl_b32 s62, s32, 10\ns_add_u32 s62, s62, {L_ST}\nv_lshl_add_u32 v10, v30, 4, s62"] + [f"ds_read_b128 {vr(32+4*mt,4)}, v10 offset:{256*mt}" for mt in range(4)]
    lh = f"buffer_load_dwordx2 v[24:25], v28, {sr(FS,4)}, s66 offen sc1"
    lz = f"buffer_load_dwordx2 v[26:27], v29, {sr(FS,4)}, s67 offen sc1"
    zp = O.zpoll
    S[zp] += [poll_addr_s(28, 64, "v1"), poll_addr_s(29, 32, "v1"), f"s_lshl_b32 s66, s4, 9\ns_add_u32 s66, s66, {F_H}\ns_lshl_b32 s67, s65, 8\ns_add_u32 s67, s67, {F_Z}",
              ("tail", [("vm", "ph", lh), ("vm", "ph", lz)])]
    S[zp+1] += [f"s_lshl_b32 s69, s65, 17\ns_lshl_b32 s62, s64, 1\ns_add_u32 s69, s69, s62"] + lines(f"""v_and_b32 v9, 7, v1
    v_lshlrev_b32 v9, 4, v9
    v_lshl_add_u32 v20, v4, 12, v9
    v_add_u32 v21, {32768-1024}, v20
    v_add_u32 v22, {2*(32768-1024)}, v20
    v_add_u32 v23, {3*(32768-1024)}, v20
    v_lshlrev_b32 v11, 4, v5
    v_lshl_add_u32 v11, v2, 7, v11
    v_add_u32 v11, s70, v11
    s_waitcnt lgkmcnt(0)""")
    S[zp+2] += [("tail", [("wait", "ph"), recheck_s(A, lh, f"v_cmp_ne_u64 vcc, {sr(TAG,2)}, v[24:25]", 8),
                          recheck_s(A, lz, f"v_cmp_ne_u64 vcc, {sr(TAG,2)}, v[26:27]", 8),
                          f"s_or_b32 s60, s2, {cw}\ns_cbranch_scc1 L_noep\ns_mov_b32 s61, {F_EPOCH}\n{set_flag_s('s61')}\nL_noep:"] +
                [("vm", "z", (f"s_mov_b32 m0, s70\ns_nop 0\n" if j == 0 else "") + f"buffer_load_dwordx4 v{20+j}, s[16:19], s69 offen offset:{j*1024} sc1 lds") for j in range(4)])]
    S[zp+5] += [("wait", "z")] + [f"ds_read_b64_tr_b16 {vr(64+2*(T*4+mt),2)}, v11 offset:{T*2048 + (mt//2)*64 + (mt%2)*8}" for T in range(2) for mt in range(4)]
    c = ["s_waitcnt lgkmcnt(0)"]
    for i in range(8):
        st = 32 + 4*(i % 4)
        for h in range(2):
            o = 96 + 4*i + 2*h
            c += lines(f"""v_lshlrev_b32 v56, 16, v{64+2*i+h}
            v_and_b32 v57, 0xffff0000, v{64+2*i+h}
            v_lshlrev_b32 v{o}, 16, v{80+2*i+h}
            v_and_b32 v{o+1}, 0xffff0000, v{80+2*i+h}
            v_sub_f32 v58, v{o}, v{st}
            v_sub_f32 v59, v{o+1}, v{st}
            v_mul_f32 v58, v58, v{st+3}
            v_mul_f32 v59, v59, v{st+3}
            v_fmac_f32 v{o}, v58, v56
            v_fmac_f32 v{o+1}, v59, v57""")
    for k, seg in enumerate(split(c, 8)): S[zp+6+k] += seg
    assert zp + 14 <= 30 and zp + 2 <= 21 and zp >= 8
    S[29] += [f"s_mul_i32 s62, s73, {CBASE}\ns_lshl_b32 s66, s32, 15\ns_add_u32 s62, s62, s66\ns_add_u32 s62, s62, 8192",
              "v_lshl_add_u32 v9, v7, 4, v30", "v_lshl_add_u32 v9, v9, 4, s62"]
    S[30] += [f"ds_write_b128 v9, {vr(96+4*i,4)} offset:{i*1024}" for i in range(8)] + ["s_waitcnt lgkmcnt(0)"]
    for k in range(0, 31):
        body = [x for x in S[k] if not (isinstance(x, tuple) and x[0] == "tail")]
        tail = [y for x in S[k] if isinstance(x, tuple) and x[0] == "tail" for y in x[1]]
        main = dma2(k+2, split_pre=True)[1] if 4 <= k+2 <= 31 else []
        if k == 0: main = dma2(2, split_pre=True)[1] + dma2(3)
        if k == 30: P.emit(("wait", "w31"))
        P.merge(main, body)
        for x in tail: P.emit(x)
        if 4 <= k+3 <= 31: A(dma2(k+3, split_pre=True)[0])
        P.emit(("wait", f"w{k+1}"))
        if k < 30: A("s_barrier")
        if O.lst: stamp(A, 32 + k)
    stamp_end(A)
    A("s_endpgm")
Opt.zpoll = 9

def role_cons(A):
    A("s_and_b32 s34, s3, 1\ns_lshr_b32 s35, s3, 1")
    XA0, XA1, WE, WO, W6, LN = 200, 201, 202, 203, 204, 205
    A(f"""v_mov_b32 v{LN}, v1
    v_lshrrev_b32 v2, 4, v1
    v_bfe_u32 v3, v1, 2, 2
    v_lshl_add_u32 v3, v2, 3, v3
    v_mul_u32_u24 v3, 448, v3
    v_and_b32 v4, 3, v1
    v_lshl_add_u32 v3, v4, 3, v3
    v_add_u32 v3, {XPART}, v3
    v_and_b32 v2, 1, v2
    v_lshlrev_b32 v4, 5, v2
    s_lshl_b32 s60, s35, 8
    v_add_u32 v5, s60, v3
    v_add_u32 v{WE}, v5, v4
    v_sub_u32 v{WO}, v5, v4
    v_xor_b32 v2, s35, v2
    v_lshlrev_b32 v2, 5, v2
    v_add3_u32 v{W6}, v3, v2, 64
    v_add_u32 v{W6}, 128, v{W6}
    v_and_b32 v2, 15, v1
    v_lshrrev_b32 v3, 1, v2
    v_lshrrev_b32 v4, 4, v1
    v_xor_b32 v3, v3, v4
    v_lshlrev_b32 v3, 4, v3
    v_lshl_add_u32 v3, v2, 7, v3
    s_lshl_b32 s60, s34, 13
    v_add_u32 v{XA0}, s60, v3
    v_xor_b32 v{XA1}, 64, v{XA0}""")
    for i in range(112): A(f"v_mov_b32 v{i}, 0")
    ONE, CA = 244, 216
    for q in range(4): A(f"v_mov_b32 v{ONE+q}, 0x3f803f80")
    srd(A, 16, P_WS, CS_BYTES, WS_CS)
    A(f"""s_mov_b32 s68, s88
    s_add_u32 s69, s68, 2
    s_mul_i32 s60, s89, {3584*4}
    s_mul_i32 s61, s5, {224*4}
    s_add_u32 s60, s60, s61
    s_lshl_b32 s70, s35, 9
    s_add_u32 s70, s70, s60
    s_lshl_b32 s71, s35, 6
    s_add_u32 s71, s71, s60
    v_and_b32 v206, 48, v{LN}
    s_cmp_eq_u32 s34, 0
    s_cselect_b32 s68, s68, 100
    s_cselect_b32 s69, s69, 100
    s_waitcnt lgkmcnt(0)""")
    A(get_tag_s())
    SW = [112, 156]; SX = [140, 184]
    def w_reads(dst, step, ft):
        out = []
        for hh in range(2):
            off = (32*step + 4*hh)*448
            if ft < 6: out.append(f"ds_read_b64_tr_b16 {vr(dst+hh*2,2)}, v{WE if ft%2==0 else WO} offset:{off+ft*32}")
            else: out.append(f"ds_read_b64_tr_b16 {vr(dst+hh*2,2)}, v{W6} offset:{off}")
        return out
    def reads(p, step):
        xa = XA0 if step == 0 else XA1
        xr = [f"ds_read_b128 {vr(SX[p]+4*mt,4)}, v{xa} offset:{mt*2048}" for mt in range(4)]
        wr = [w_reads(SW[p]+4*ft, step, ft) for ft in range(7)]
        return [xr[0]] + wr[0] + xr[1:] + [x for l in wr[1:] for x in l]
    def mfmas(p):
        return [f"v_mfma_f32_16x16x32_bf16 {vr((ft*4+mt)*4,4)}, {vr(SW[p]+4*ft,4)}, {vr(SX[p]+4*mt,4)}, {vr((ft*4+mt)*4,4)}"
                for ft in range(7) for mt in range(4)]
    d = [SLOTS[1]-SLOTS[0], SLOTS[2]-SLOTS[1], SLOTS[0]-SLOTS[2]]
    A(f"""s_mov_b32 s74, 0
    s_mov_b32 s76, {d[0]}
    s_mov_b32 s78, {d[1]}
    s_mov_b32 s79, {d[2] & 0xffffffff}""")
    stamp(A, 1)
    A("s_setprio 2\ns_barrier")
    stamp(A, 2); stamp_cyc(A, 16)
    for x in reads(0, 0): A(x)
    A(".p2align 6\nL_cloop:\ns_waitcnt lgkmcnt(0)")
    adv = [f"v_add_u32 v{r}, s76, v{r}" for r in (XA0, XA1, WE, WO, W6)]
    rot = ["s_cmp_eq_u32 s74, s69\ns_cbranch_scc1 L_c_fl\nL_c_flback:", "s_mov_b32 s61, s76\ns_mov_b32 s76, s78", "s_mov_b32 s78, s79\ns_mov_b32 s79, s61",
           "s_add_u32 s74, s74, 1", "s_cmp_lt_u32 s74, 16"]
    for x in interleave(mfmas(0), reads(1, 1) + adv + ["s_cmp_eq_u32 s74, s68"]): A(x)
    A("s_waitcnt lgkmcnt(0)\ns_barrier\ns_cbranch_scc1 L_c_cs\nL_c_csback:")
    for x in interleave(mfmas(1), reads(0, 0) + rot): A(x)
    A(f"s_cbranch_scc1 L_cloop\ns_setprio {O.epi_prio}")
    stamp(A, 3); stamp_cyc(A, 17)
    srd(A, 8, P_WS, H_BYTES, WS_H)
    ST, CS, T0, OUT, SS = 112, 128, 156, 172, 188
    A(f"""v_and_b32 v207, 15, v{LN}
    v_lshlrev_b32 v207, 4, v207
    s_lshl_b32 s60, s34, 10
    s_add_u32 s60, s60, {L_ST}
    v_add_u32 v207, s60, v207
    s_lshl_b32 s60, s35, 9
    s_add_u32 s60, s60, {L_CS}
    v_add_u32 v208, s60, v206
    s_lshl_b32 s60, s35, 6
    s_add_u32 s60, s60, {L_CS + 384}
    v_add_u32 v209, s60, v206""")
    for mt in range(4): A(f"ds_read_b128 {vr(ST+4*mt,4)}, v207 offset:{mt*256}")
    for ft in range(6): A(f"ds_read_b128 {vr(CS+4*ft,4)}, v208 offset:{ft*64}")
    A(f"ds_read_b128 {vr(CS+24,4)}, v209")
    A(f"""s_lshl_b32 s60, s4, 4
    s_add_u32 s60, s60, s5
    s_lshl_b32 s64, s60, 13
    s_add_u32 s64, s64, {H_SH}
    s_lshl_b32 s61, s35, 10
    s_add_u32 s64, s64, s61
    s_lshl_b32 s65, s34, 12
    s_add_u32 s64, s64, s65
    s_mul_i32 s60, s60, 6
    s_mul_i32 s61, s35, 3
    s_add_u32 s60, s60, s61
    s_lshl_b32 s61, s60, 13
    s_add_u32 s61, s61, s65
    s_add_u32 s62, s61, 8192
    s_add_u32 s63, s61, 16384
    v_lshlrev_b32 v206, 4, v{LN}""")
    if O.pfw2g:
        srd(A, 12, P_W2, W_BYTES)
        A(f"s_lshl_b32 s66, s2, 2\ns_add_u32 s66, s66, s3\ns_mul_i32 s66, s66, 7168\ns_add_u32 s67, s66, 4096")
        for i in range(7): A(f"buffer_load_dwordx4 {vr(216+4*i,4)}, v206, s[12:15], s{66 + i//4} offen offset:{(i%4)*1024}")
    A("s_waitcnt lgkmcnt(0)")
    if O.epk:
        for mt in range(4): A(f"v_mov_b32 v{SS+2*mt}, v{ST+4*mt+1}")
    else:
        for mt in range(4): A(f"v_sub_f32 v{ST+4*mt}, 0, v{ST+4*mt}")
    A(".p2align 3")
    def silu2(tiles):
        if not O.epk:
            for ft, mt, dst, t in tiles:
                for q in range(4): A(f"v_fmac_f32 v{(ft*4+mt)*4+q}, v{CS+4*ft+q}, v{ST+4*mt}")
            for ft, mt, dst, t in tiles:
                for q in range(4): A(f"v_mul_f32 v{t+q}, v{(ft*4+mt)*4+q}, v{ST+4*mt+2}")
            for ft, mt, dst, t in tiles:
                for q in range(4): A(f"v_exp_f32 v{t+q}, v{t+q}")
            for ft, mt, dst, t in tiles:
                for q in range(4): A(f"v_fma_f32 v{t+q}, v{t+q}, v{ST+4*mt+1}, v{ST+4*mt+1}")
            for ft, mt, dst, t in tiles:
                for q in range(4): A(f"v_rcp_f32 v{t+q}, v{t+q}")
            for ft, mt, dst, t in tiles:
                for q in range(4): A(f"v_mul_f32 v{t+q}, v{t+q}, v{(ft*4+mt)*4+q}")
            for ft, mt, dst, t in tiles:
                for h in range(2): A(f"v_cvt_pk_bf16_f32 v{dst+h}, v{t+2*h}, v{t+2*h+1}")
            return
        for ft, mt, dst, t in tiles:
            a = (ft*4+mt)*4; st = ST+4*mt; cs = CS+4*ft
            for h in range(2):
                A(f"v_pk_fma_f32 {vr(a+2*h,2)}, {vr(cs+2*h,2)}, {vr(st,2)}, {vr(a+2*h,2)} op_sel_hi:[1,0,1] neg_lo:[1,0,0] neg_hi:[1,0,0]")
        for ft, mt, dst, t in tiles:
            a = (ft*4+mt)*4; st = ST+4*mt
            for h in range(2): A(f"v_pk_mul_f32 {vr(t+2*h,2)}, {vr(a+2*h,2)}, {vr(st+2,2)} op_sel_hi:[1,0]")
        for ft, mt, dst, t in tiles:
            for q in range(4): A(f"v_exp_f32 v{t+q}, v{t+q}")
        for ft, mt, dst, t in tiles:
            for h in range(2):
                A(f"v_pk_fma_f32 {vr(t+2*h,2)}, {vr(t+2*h,2)}, {vr(SS+2*mt,2)}, {vr(SS+2*mt,2)} op_sel_hi:[1,0,0]")
        for ft, mt, dst, t in tiles:
            for q in range(4): A(f"v_rcp_f32 v{t+q}, v{t+q}")
        for ft, mt, dst, t in tiles:
            a = (ft*4+mt)*4
            for h in range(2): A(f"v_pk_mul_f32 {vr(t+2*h,2)}, {vr(t+2*h,2)}, {vr(a+2*h,2)}")
        for ft, mt, dst, t in tiles:
            for h in range(2): A(f"v_cvt_pk_bf16_f32 v{dst+h}, v{t+2*h}, v{t+2*h+1}")
    cnt = 0
    for pr in range(3):
        for mt in range(4):
            o = OUT + 4*(cnt % 4); cnt += 1
            silu2([(2*pr, mt, o, T0), (2*pr+1, mt, o+2, T0+4)])
            A(f"buffer_store_dwordx4 {vr(o,4)}, v206, s[8:11], s{61+pr} offen offset:{mt*1024} sc1")
    for mt in range(0, 4, 2):
        o = OUT + 4*(cnt % 4); cnt += 1
        silu2([(6, mt, o, T0), (6, mt+1, o+2, T0+4)])
        A(f"buffer_store_dwordx4 {vr(o,4)}, v206, s[8:11], s64 offen offset:{mt*1024} sc1")
    stamp(A, 4)
    A("s_barrier")
    SW2 = [64, 96]; SH2 = [80, 112]; WT1, WT2, VH = 192, 196, 198; HI = 48
    PK = 216
    A(f"""s_lshl_b32 s60, s34, 12
    s_add_u32 s60, s60, 16384
    v_add_u32 v{VH}, s60, v206
    v_lshrrev_b32 v209, 2, v{LN}
    v_and_b32 v207, 3, v{LN}
    v_lshlrev_b32 v207, 3, v207
    s_lshl_b32 s60, s35, 6
    v_and_b32 v208, 7, v209
    v_lshlrev_b32 v208, 5, v208
    v_xor_b32 v208, s60, v208
    v_lshl_add_u32 v208, v209, 8, v208
    v_add_u32 v{WT1}, v208, v207
    v_bfe_u32 v208, v{LN}, 3, 2
    v_lshlrev_b32 v208, 5, v208
    v_xor_b32 v208, s60, v208
    v_lshl_add_u32 v208, v209, 7, v208
    v_add_u32 v{WT2}, v208, v207
    v_xor_b32 v{WT1+1}, 32, v{WT1}
    v_xor_b32 v{WT1+2}, 128, v{WT1}
    v_xor_b32 v{WT1+3}, 160, v{WT1}
    v_xor_b32 v{WT2+1}, 32, v{WT2}
    s_lshl_b32 s64, s4, 9
    s_add_u32 s64, s64, {F_H}
    s_lshl_b32 s63, s5, 2
    s_add_u32 s63, s63, s3
    s_lshl_b32 s63, s63, 3
    s_add_u32 s63, s63, s64
    s_waitcnt vmcnt(0)""")
    A(set_flag_s("s63"))
    stamp(A, 5)
    pfg = [f"s_load_dwordx2 s[82:83], s[80:81], {q*128+60}" for q in range(4*(16 - O.pf0), 56)] if O.pf_w2 else []
    A(f"""s_lshl_b32 s60, s2, 2
    s_add_u32 s60, s60, s3
    s_mul_i32 s60, s60, 7168
    s_add_u32 s80, s{P_W2}, s60
    s_addc_u32 s81, s{P_W2+1}, 0""")
    for x in pfg[:12]: A(x)
    for i in range(7): A(f"v_add_u32 v{WT1+HI+i}, {CBASE}, v{WT1+i}")
    for i in range(64): A(f"v_mov_b32 v{i}, 0")
    srd(A, 12, P_WS, PART_BYTES, WS_PART)
    srd(A, 16, P_OUT, MB4)
    A(f"""s_xor_b32 s60, s2, 1
    s_lshl_b32 s60, s60, 2
    s_add_u32 s60, s60, s3
    s_mul_i32 s66, s60, 6144
    s_add_u32 s67, s66, 4096
    s_lshl_b32 s60, s2, 2
    s_add_u32 s60, s60, s3
    s_mul_i32 s68, s60, 6144
    s_add_u32 s69, s68, 4096
    s_mul_i32 s70, s35, {CBASE}
    s_lshl_b32 s60, s34, 15
    s_add_u32 s70, s70, s60
    s_add_u32 s70, s70, 8192
    v_add_u32 v200, s70, v206
    v_and_b32 v201, 15, v{LN}
    v_mul_u32_u24 v201, 80, v201
    v_lshrrev_b32 v202, 4, v{LN}
    v_lshl_add_u32 v201, v202, 3, v201
    v_add_u32 v201, s70, v201
    v_lshlrev_b32 v207, 1, v207
    v_mul_u32_u24 v202, 80, v209
    v_add3_u32 v202, v202, v207, s70
    v_lshl_add_u32 v203, v209, 11, v207
    s_lshl_b32 s65, s4, 18
    s_lshl_b32 s61, s34, 17
    s_add_u32 s65, s65, s61
    s_and_b32 s61, s5, 7
    s_lshl_b32 s61, s61, 8
    s_add_u32 s65, s65, s61
    s_and_b32 s61, s5, 8
    s_lshl_b32 s61, s61, 4
    s_add_u32 s65, s65, s61
    s_lshl_b32 s61, s35, 6
    s_add_u32 s65, s65, s61
    s_and_b32 s76, s5, 8
    s_lshl_b32 s61, s76, 5
    s_add_u32 s64, s64, s61
    s_and_b32 s72, s5, 7
    s_lshl_b32 s77, s3, 12
    s_lshl_b32 s60, s4, 4
    s_add_u32 s79, s60, s76
    s_mul_i32 s79, s79, {6*8192}
    s_add_u32 s79, s79, s77
    {poll_addr_s(254, 32, f"v{LN}")}""")
    lf = f"buffer_load_dwordx2 v[250:251], v254, {sr(FS,4)}, s64 offen sc1"
    A(lf + "\ns_waitcnt vmcnt(0)")
    A(recheck_s(A, lf, f"v_cmp_ne_u64 vcc, {sr(TAG,2)}, v[250:251]", 4))
    stamp(A, 6)
    for j in range(2):
        A(f"""s_bfe_u32 s60, s84, {(5 << 16) | (5*j):#x}
        s_mul_i32 s61, s72, 3
        s_add_u32 s60, s60, s61
        s_cmp_ge_u32 s60, 24
        s_cselect_b32 s61, 24, 0
        s_sub_u32 s60, s60, s61
        s_lshl_b32 s60, s60, 14
        s_add_u32 m0, s77, {RB[j] + 16384}
        s_add_u32 s60, s60, s79""")
        for i in range(4): A(f"buffer_load_dwordx4 v206, s[8:11], s60 offen offset:{i*1024} sc1 lds")
    for x in pfg[12:]: A(x)
    A("s_setprio 2\ns_waitcnt vmcnt(0) lgkmcnt(0)")
    stamp(A, 11)
    A("s_barrier")
    stamp(A, 7); stamp_cyc(A, 18)
    def reads2(p, slot, step, ph2):
        hi = HI*(slot // 2); so = (slot % 2)*32768
        hr = [f"ds_read_b128 {vr(SH2[p]+4*mt,4)}, v{VH+hi} offset:{so + step*8192 + mt*1024}" for mt in range(4)]
        if not ph2:
            wr = [f"ds_read_b64_tr_b16 {vr(SW2[p]+4*T+2*hh,2)}, v{WT1+hi+T} offset:{so + step*8192 + hh*4096}" for T in range(4) for hh in range(2)]
            return wr[:2] + hr + wr[2:]
        wr = [f"ds_read_b64_tr_b16 {vr(SW2[p]+4*T+2*hh,2)}, v{WT2+hi+T} offset:{so + step*4096 + hh*2048}" for T in range(2) for hh in range(2)]
        return hr + wr
    def mfmas2(p, nT):
        return [f"v_mfma_f32_16x16x32_bf16 {vr((T*4+mt)*4,4)}, {vr(SW2[p]+4*T,4)}, {vr(SH2[p]+4*mt,4)}, {vr((T*4+mt)*4,4)}"
                for T in range(nT) for mt in range(4)]
    def phase(mf, rd, nprev, extra=(), pre=""):
        k = 0; e = 0
        for i, m in enumerate(mf):
            if i % 4 == 0:
                need = 6 + 2*(i//4)
                if pre and i == 0:
                    A(f"s_waitcnt lgkmcnt({nprev - 4})"); A(pre)
                A(f"s_waitcnt lgkmcnt({nprev - need + k})")
            A(m)
            if k < len(rd): A(rd[k]); k += 1
            elif e < len(extra): A(extra[e]); e += 1
        while e < len(extra): A(extra[e]); e += 1
    for x in reads2(0, 0, 0, False): A(x)
    A("s_mov_b32 s75, 0\n.p2align 3\nL_g1_loop:")
    for sl in range(4):
        phase(mfmas2(0, 4), reads2(1, sl, 1, False), 12, ["s_add_u32 s75, s75, 1\ns_cmp_eq_u32 s75, 6"] if sl == 3 else [])
        A("s_barrier")
        if sl == 3: A("s_cbranch_scc1 L_g1_last")
        phase(mfmas2(1, 4), reads2(0, (sl+1) % 4, 0, False), 12)
    A("s_branch L_g1_loop\nL_g1_last:")
    phase(mfmas2(1, 4), reads2(0, 0, 0, True), 12)
    stamp(A, 8); stamp_cyc(A, 19)
    pack = []
    for gq in range(6):
        t = ""
        for q in range(3):
            k = gq*3 + q
            if k < 16: t += f"v_cvt_pk_bf16_f32 v{PK+4*gq+q}, v{32+2*k}, v{33+2*k}\n"
        t += f"v_mov_b32 v{PK+4*gq+3}, s{TAG}\n"
        t += f"buffer_store_dwordx4 {vr(PK+4*gq,4)}, v206, s[12:15], {'s66' if gq < 4 else 's67'} offen offset:{(gq%4)*1024} sc1"
        pack.append(t)
    PL = 128
    pl = [f"buffer_load_dwordx4 {vr(PL+4*gq,4)}, v206, s[12:15], {'s68' if gq < 4 else 's69'} offen offset:{(gq%4)*1024} sc1" for gq in range(6)]
    E = 160
    for j in range(8):
        sl = j % 4
        for ph in range(2):
            step = 2*j + ph
            b = SH2[ph]
            sw_ = f"v_swap_b32 v{b+2}, v{b+4}\nv_swap_b32 v{b+3}, v{b+5}\nv_swap_b32 v{b+10}, v{b+12}\nv_swap_b32 v{b+11}, v{b+13}\ns_nop 0"
            extra = []
            if step == 0: extra += pack
            if step == O.pl_step: extra += pl
            if ph == 1 and j < 7: A("s_barrier")
            rd = reads2(1, sl, 1, True) if ph == 0 else (reads2(0, (sl+1) % 4, 0, True) if j < 7 else [f"ds_read_b128 {vr(E+4*i,4)}, v200 offset:{i*1024}" for i in range(8)])
            phase(mfmas2(ph, 2), rd, 8, extra, pre=sw_)
    stamp(A, 9); stamp_cyc(A, 20)
    A("s_waitcnt vmcnt(0)")
    cmp = f"""v_xor_b32 v70, s{TAG}, v{PL+3}
    v_xor_b32 v71, s{TAG}, v{PL+7}
    v_xor_b32 v72, s{TAG}, v{PL+11}
    v_or3_b32 v70, v70, v71, v72
    v_xor_b32 v71, s{TAG}, v{PL+15}
    v_xor_b32 v72, s{TAG}, v{PL+19}
    v_or3_b32 v70, v70, v71, v72
    v_xor_b32 v71, s{TAG}, v{PL+23}
    v_or_b32 v70, v70, v71
    v_cmp_ne_u32 vcc, 0, v70"""
    A(recheck_s(A, "\n".join(pl), cmp, 1))
    A("s_waitcnt lgkmcnt(0)")
    stamp(A, 10)
    for i in range(8):
        T, mt = i // 4, i % 4
        for h in range(2):
            k = 2*i + h
            pr = PL + 4*(k // 3) + k % 3
            A(f"""v_lshlrev_b32 v74, 16, v{pr}
            v_and_b32 v75, 0xffff0000, v{pr}
            v_pk_add_f32 {vr(2*k,2)}, {vr(2*k,2)}, {vr(E+2*k,2)}
            v_pk_add_f32 {vr(2*k,2)}, {vr(2*k,2)}, v[74:75]
            v_cvt_pk_bf16_f32 v{80+k}, v{2*k}, v{2*k+1}""")
        A(f"ds_write_b64 v201, {vr(80+2*i,2)} offset:{mt*16*80 + T*32}")
    A("s_waitcnt lgkmcnt(0)")
    for j in range(4): A(f"ds_read_b128 {vr(96+4*j,4)}, v202 offset:{j*16*80}")
    for j in range(4):
        A(f"s_waitcnt lgkmcnt({3-j})\nbuffer_store_dwordx4 {vr(96+4*j,4)}, v203, s[16:19], s65 offen {O.out_sc}\ns_add_u32 s65, s65, {16*2048}")
    stamp_end(A)
    A("s_endpgm\nL_c_cs:")
    for ft in range(7): A(f"v_mfma_f32_16x16x32_bf16 {vr(CA+4*ft,4)}, {vr(SW[0]+4*ft,4)}, {vr(ONE,4)}, 0")
    for ft in range(7): A(f"v_mfma_f32_16x16x32_bf16 {vr(CA+4*ft,4)}, {vr(SW[1]+4*ft,4)}, {vr(ONE,4)}, {vr(CA+4*ft,4)}")
    A("s_mov_b32 exec_lo, 0x00010001\ns_mov_b32 exec_hi, 0x00010001")
    for ft in range(6): A(f"buffer_store_dwordx4 {vr(CA+4*ft,4)}, v206, s[16:19], s70 offen offset:{ft*64} sc1")
    A(f"""s_nop 1
    buffer_store_dwordx4 {vr(CA+24,4)}, v206, s[16:19], s71 offen offset:384 sc1
    s_mov_b64 exec, -1
    s_branch L_c_csback
    L_c_fl:
    s_lshl_b32 s63, s5, 8
    s_lshl_b32 s60, s4, 4
    s_add_u32 s63, s63, s60
    s_lshl_b32 s60, s35, 3
    s_add_u32 s63, s63, s60
    s_add_u32 s63, s63, {F_CS}
    s_waitcnt vmcnt(0)
    {set_flag_s("s63")}
    s_branch L_c_flback""")

def order1(r):
    c = r & 3
    key = {}
    for s in range(16):
        k = float(s)
        if O.order == 2 and s % 4 == c: k = s - O.lead_d - 0.5
        if s == r: k = min(k, ((r*O.lead_mul) >> 4) - 0.75)
        key[s] = k
    return sorted(range(16), key=lambda s: key[s])
def order2(c):
    key = {s: (s - O.lead_d - 0.5 if (O.g2lead and s % 4 == c) else float(s)) for s in range(12)}
    return sorted(range(12), key=lambda s: key[s])

def gen():
    A = Asm()
    A(f"""s_cmp_ge_u32 s2, 256
    s_cbranch_scc1 L_end
    s_load_dwordx16 s[36:51], s[0:1], 0
    s_load_dwordx8 s[52:59], s[0:1], 64
    s_and_b32 s6, s2, 7
    s_lshr_b32 s7, s2, 3
    s_lshr_b32 s4, s6, 1
    s_lshl_b32 s4, s4, 2
    s_lshr_b32 s5, s7, 3
    s_add_u32 s4, s4, s5
    s_and_b32 s5, s6, 1
    s_lshl_b32 s5, s5, 3
    s_and_b32 s7, s7, 7
    s_add_u32 s5, s5, s7
    s_add_u32 s6, s4, s5
    s_and_b32 s6, s6, 3
    s_and_b32 s7, s4, 12
    s_and_b32 s60, s5, 12
    s_add_u32 s7, s7, s60
    s_and_b32 s7, s7, 12
    s_add_u32 s6, s6, s7
    s_lshl_b32 s6, s6, 4
    s_and_b32 s7, s4, 3
    s_lshl_b32 s7, s7, 3
    s_getpc_b64 s[60:61]
    L_pc:
    s_add_u32 s60, s60, L_table - L_pc
    s_addc_u32 s61, s61, 0
    s_load_dwordx2 s[{PERM}:{PERM+1}], s[60:61], s6
    s_load_dwordx2 s[88:89], s[60:61], s6 offset:8
    s_load_dwordx2 s[84:85], s[60:61], s7 offset:256
    v_lshrrev_b32 v2, 6, v0
    v_and_b32 v1, 63, v0
    v_readfirstlane_b32 s3, v2
    s_waitcnt lgkmcnt(0)""")
    stamp_init(A)
    srd(A, FS, P_WS, FL_BYTES, WS_FL)
    A(f"""s_load_dwordx2 s[96:97], s[{FS}:{FS+1}], {F_EPOCH}
    s_cmp_lt_u32 s3, 4
    s_cbranch_scc1 L_cons""")
    helper_head(A)
    A("s_cmp_lt_u32 s3, 6\ns_cbranch_scc1 L_progA")
    helper_phase1(A, "B")
    A("s_branch L_conv_start\nL_progA:")
    helper_phase1(A, "A")
    helper_tail(A)
    A("L_cons:"); role_cons(A)
    A("L_end:\ns_endpgm\n.p2align 6\n.type L_table,@object\nL_table:")
    for r in range(16):
        o = order1(r); v = sum(s << (4*j) for j, s in enumerate(o))
        assert o.index(r) <= 8
        A(f".long {v & 0xffffffff:#x}, {v >> 32:#x}, {o.index(r)}, {r}")
    for c in range(4):
        o = order2(c)
        A(f".long {sum(s << (5*j) for j, s in enumerate(o[:6])):#x}, {sum(s << (5*j) for j, s in enumerate(o[6:])):#x}")
    A(".size L_table, 288")
    HEAD = open("cdna_kernels/" + NAME + ".s.ref").read().split("; Override")[0]
    hdr = HEAD + f"""; @launch grid=(256,1,1) block=(512,1,1) lds={LDS_TOTAL}
.amdgcn_target "amdgcn-amd-amdhsa--gfx950"
.text
"""
    return hdr + kernel(NAME + "_kernel", A.text(), 256, sgpr=100)

if __name__ == "__main__":
    out = "cdna_kernels/" + NAME + ".s"
    for a in sys.argv[1:]:
        if a == "--stamps": O.stamps = True
        elif "=" in a:
            k, v = a.split("=")
            setattr(O, k, int(v) if v.lstrip("-").isdigit() else v)
        else: out = a
    open(out, "w").write(gen())
```

```python
import sys, struct, math
from base import *

NAME = "parallel_sum__ssm_conv_h3__dense_activation_silu__prompt"
WS_H, H_BYTES = 0, 2048*3584*2
H_SH = 16*96*8192
WS_KVT, KVT_BYTES = 0x1000000, 4 << 20
WS_Z, Z_BYTES = 0x1400000, 4 << 20
WS_ST, ST_BYTES = 0x1800000, 2048*16
WS_CS, CS_BYTES = 0x1810000, 16*3584*4
WS_FL, FL_BYTES = 0x1900000, 0x10000
F_EPOCH, F_CS, F_KV, F_H, F_Z = 0, 0x1000, 0x2000, 0x4000, 0x6000
WS_PART, PART_BYTES = 0x1A00000, 256*4*6144
WS_STAMP = 0x3000000
P_Q, P_K, P_V, P_SK, P_SSM, P_D, P_W1, P_W2, P_OUT, P_DBG, P_WS = 36, 38, 40, 42, 44, 46, 50, 52, 54, 56, 58
TAG = 94
MB4 = 4 << 20
W_BYTES = 1024*3584*2
LOG2E = 1.4426950408889634
SPIN_MAX = 50000

class Opt:
    stamps = False
    order = 2
    lead_mul = 8
    lead_d = 2
    pf_w2 = 1
    epi_prio = 2
    kvl = 2
    kvs = 4
    kv0 = 7
    kvn = 6
    stl = 7
    st0 = 9
    ssm = 11
    badmap = 0
    tlb = 0
    nt = 'nt'
    pf0 = 8
    pfw2g = 0
    pl_step = 10
    out_sc = ""
    noside = 0
    g2lead = 1
    epk = 1
    c0pos = 12
    stn = 4
    hprio1 = 0
    hprio2 = 0
    cprio = 0
    lst = 1
    hsc = 'sc1'
    fake_h = 0
    fake_w2 = 0
    nomf = 0
O = Opt()

def f32(x): return "0x%08x" % struct.unpack("<I", struct.pack("<f", x))[0]
def srd_s(d, p, size, off=0):
    a = f"s_add_u32 s{d}, s{p}, {off:#x}\ns_addc_u32 s{d+1}, s{p+1}, 0" if off else f"s_mov_b32 s{d}, s{p}\ns_mov_b32 s{d+1}, s{p+1}"
    return a + f"\ns_mov_b32 s{d+2}, {size:#x}\ns_mov_b32 s{d+3}, 0x20000"
def srd(A, d, p, size, off=0): A(srd_s(d, p, size, off))

def stamp(A, i):
    if O.stamps:
        A(f"s_memrealtime s[92:93]\ns_waitcnt lgkmcnt(0)\nv_writelane_b32 v255, s92, {i}")
def stamp_cyc(A, i):
    if O.stamps:
        A(f"s_memtime s[92:93]\ns_waitcnt lgkmcnt(0)\ns_sub_u32 s92, s92, s90\nv_writelane_b32 v255, s92, {i}")
def stamp_init(A):
    if O.stamps:
        A("v_mov_b32 v255, 0\ns_memtime s[90:91]")
        stamp(A, 0)
def stamp_end(A):
    if O.stamps:
        A("s_waitcnt vmcnt(0)")
        stamp(A, 14)
        stamp_cyc(A, 15)
        srd(A, 8, P_WS, 0x80000, WS_STAMP)
        A("""s_lshl_b32 s60, s2, 3
        s_add_u32 s60, s60, s3
        s_lshl_b32 s60, s60, 8
        v_mbcnt_lo_u32_b32 v0, -1, 0
        v_mbcnt_hi_u32_b32 v0, -1, v0
        v_lshlrev_b32 v0, 2, v0
        buffer_store_dword v255, v0, s[8:11], s60 offen""")

SLOT = 45056
XPART = 16384
SLOTS = [0, 70656, 115712]
CREG = 20224
CBASE = 79872
L_CS = 160768
L_ST = L_CS + 1024
LDS_TOTAL = L_ST + 2048
HA0, HA1, UA, UB = 0, 4352, 8704, 8704 + 5760
E_OFF, ZT_OFF, XT_OFF = 0, 8192, 8192 + 4096
FS = 28
HB = CBASE
VT = 248
PERM = 86

def get_tag_s():
    a = 6364136223846793005; c = 1442695040888963407
    return f"""s_mul_i32 s{TAG}, s96, {a & 0xffffffff:#x}
    s_mul_hi_u32 s{TAG+1}, s96, {a & 0xffffffff:#x}
    s_mul_i32 s60, s96, {a >> 32:#x}
    s_add_u32 s{TAG+1}, s{TAG+1}, s60
    s_mul_i32 s60, s97, {a & 0xffffffff:#x}
    s_add_u32 s{TAG+1}, s{TAG+1}, s60
    s_add_u32 s{TAG}, s{TAG}, {c & 0xffffffff:#x}
    s_addc_u32 s{TAG+1}, s{TAG+1}, {c >> 32:#x}"""

def set_flag_s(soff):
    return f"""v_mov_b32 v{VT}, s{TAG}
    v_mov_b32 v{VT+1}, s{TAG+1}
    s_mov_b64 exec, 1
    buffer_store_dwordx2 {vr(VT,2)}, off, {sr(FS,4)}, {soff} sc1
    s_mov_b64 exec, -1"""

def spin_max(): return 1 if O.noside else SPIN_MAX

def poll_addr_s(areg, nflags, lane):
    if nflags < 64: return f"v_min_u32 v{areg}, {nflags-1}, {lane}\nv_lshlrev_b32 v{areg}, 3, v{areg}"
    return f"v_lshlrev_b32 v{areg}, 3, {lane}"
def recheck_s(A, load, cmp, sleep):
    lp = A.label("rp"); dn = A.label("rpok")
    return f"""{cmp}
    s_cbranch_vccz {dn}
    s_mov_b32 s62, {spin_max()}
    {lp}:
    s_sleep {sleep}
    {load}
    s_waitcnt vmcnt(0)
    {cmp}
    s_cbranch_vccz {dn}
    s_sub_u32 s62, s62, 1
    s_cmp_lg_u32 s62, 0
    s_cbranch_scc1 {lp}
    {dn}:"""

class Prog:
    def __init__(self, A):
        self.A = A; self.q = []; self.done = 0
    def emit(self, it):
        if isinstance(it, str): self.A(it)
        elif it[0] == "vm":
            self.A(it[2]); self.q += [it[1]]*(it[3] if len(it) > 3 else 1)
        elif it[0] == "wait":
            idx = max(i for i, t in enumerate(self.q) if t == it[1])
            if idx >= self.done:
                n = len(self.q) - 1 - idx
                assert n <= 63
                self.A(f"s_waitcnt vmcnt({n})")
                self.done = idx + 1
        elif it[0] == "waitolder":
            idx = self.q.index(it[1])
            self.A(f"s_waitcnt vmcnt({len(self.q) - idx})")
            self.done = max(self.done, idx)
    def merge(self, main, side):
        if not main:
            for s in side: self.emit(s)
            return
        per = len(side) / len(main); acc = 0.0; k = 0
        for m in main:
            self.emit(m); acc += per
            while k < len(side) and k < acc - 1e-9:
                self.emit(side[k]); k += 1
        while k < len(side): self.emit(side[k]); k += 1

def split(items, n):
    per = math.ceil(len(items) / n)
    return [items[i*per:(i+1)*per] for i in range(n)]
def lines(txt): return [l.strip() for l in txt.split("\n") if l.strip()]

CU_, CH_ = 216, 232
def conv_load_h_items():
    return [srd_s(24, P_SSM, MB4), "v_lshlrev_b32 v2, 4, v1"] + \
           [("vm", "ssm", f"buffer_load_dwordx4 {vr(CH_+4*j,4)}, v2, s[24:27], s69 offen offset:{j*1024} {O.nt}") for j in range(4)]
def conv_load_u_items():
    return [srd_s(24, P_WS, KVT_BYTES, WS_KVT), "s_lshl_b32 s64, s2, 14\ns_lshl_b32 s61, s33, 4\ns_add_u32 s64, s64, s61\nv_lshlrev_b32 v2, 6, v1"] + \
           [("vm", "u", f"buffer_load_dwordx4 {vr(CU_+4*j,4)}, v2, s[24:27], s64 offen sc1\ns_add_u32 s64, s64, 4096") for j in range(4)]

VX, VW = 4, 8
def helper_head(A):
    hw = "s33"
    A(f"""s_setprio {O.hprio1}
    s_sub_u32 s33, s3, 4
    s_and_b32 s32, s3, 1""")
    srd(A, 8, P_Q, MB4)
    srd(A, 12, P_W1, W_BYTES)
    A(f"""v_lshrrev_b32 v2, 3, v1
    v_lshrrev_b32 v3, 4, v1
    v_xor_b32 v3, v3, v1
    v_and_b32 v3, 7, v3
    v_lshlrev_b32 v3, 4, v3
    v_lshl_add_u32 v3, v2, 11, v3
    s_lshl_b32 s60, s4, 18
    s_lshl_b32 s61, {hw}, 16
    s_add_u32 s60, s60, s61
    v_add_u32 v{VX}, s60, v3
    v_xor_b32 v3, 64, v{VX}
    v_add_u32 v{VX+1}, {16384-1024}, v3
    v_add_u32 v{VX+2}, {2*(16384-1024)}, v{VX}
    v_add_u32 v{VX+3}, {3*(16384-1024)}, v3
    s_lshl_b32 s70, {hw}, 12
    s_mul_i32 s71, {hw}, 7168
    s_add_u32 s71, s71, {XPART}
    s_and_b32 s63, s{PERM}, 15
    s_lshl_b32 s72, s63, 7
    s_mul_i32 s73, s63, {64*7168}
    s_mov_b32 m0, s70
    s_mul_i32 s60, s5, 448""")
    for i in range(4): A(f"buffer_load_dwordx4 v{VX+i}, s[8:11], s72 offen offset:{i*1024} lds")
    A(f"""s_mul_i32 s61, {hw}, {16*7168}
    s_add_u32 s60, s60, s61
    s_movk_i32 s62, 6720
    v_lshl_add_u32 v15, v1, 4, s60""")
    for i in range(7):
        A(f"""v_add_u32 v2, {64*i}, v1
        v_mul_u32_u24 v2, 2341, v2
        v_lshrrev_b32 v2, 16, v2
        v_mad_u32_u24 v3, v2, s62, v15
        v_and_b32 v2, 8, v2
        v_lshlrev_b32 v2, 2, v2""")
        if i < 4: A(f"v_xor_b32 v{VW+i}, v2, v3")
        else: A(f"v_xor_b32 v3, v2, v3\nv_add_u32 v{VW+i}, 4096, v3")
        if i % 4 == 0: A(f"s_add_u32 m0, s71, {(i//4)*4096}\ns_nop 0")
        A(f"buffer_load_dwordx4 v{VW+i}, s[12:15], s73 offen offset:{(i%4)*1024} lds")
    A(f"""s_lshr_b32 s60, s2, 3
    s_lshl_b32 s60, s60, 5
    s_lshl_b32 s61, s33, 3
    s_add_u32 s60, s60, s61
    s_and_b32 s61, s2, 7
    s_add_u32 s68, s60, s61
    s_lshl_b32 s69, s68, 12
    s_lshl_b32 s60, s68, 1
    s_and_b32 s60, s60, 0xfffffffc
    s_load_dword s67, s[{P_D}:{P_D+1}], s60
    s_lshl_b32 s60, s2, 2
    s_add_u32 s60, s60, {hw}
    s_mul_i32 s60, s60, 7168
    s_add_u32 s80, s{P_W2}, s60
    s_addc_u32 s81, s{P_W2+1}, 0""")

def dma_items(j):
    sl = SLOTS[j % 3]
    reg = PERM + (j // 8)
    it = []
    for i in range(4):
        pre = f"s_bfe_u32 s63, s{reg}, {(4 << 16) | (4*(j % 8)):#x}\ns_add_u32 m0, s70, {sl}\ns_lshl_b32 s72, s63, 7\n" if i == 0 else ""
        post = f"\ns_mul_i32 s73, s63, {64*7168}" if i == 0 else ""
        it.append(("vm", f"d{j}", pre + f"buffer_load_dwordx4 v{VX+i}, s[8:11], s72 offen offset:{i*1024} lds" + post))
    for i in range(7):
        pre = f"s_add_u32 m0, s71, {sl + (i//4)*4096}\ns_nop 0\n" if i % 4 == 0 else ""
        it.append(("vm", f"d{j}", pre + f"buffer_load_dwordx4 v{VW+i}, s[12:15], s73 offen offset:{(i%4)*1024} lds"))
    return it

def helper_phase1(A, kind):
    sw = "s32"
    P = Prog(A); P.q = ["d0"]*11
    S = {j: [] for j in range(1, 18)}
    if kind == "B":
        TR, KR, VR = 16, 32, 76
        TW, KU, VU, OUT = 108, 116, 138, 154
        so = ["0", "s64", "s65", "s66"]
        S[1] += [srd_s(20, P_WS, KVT_BYTES, WS_KVT), srd_s(16, P_K, MB4), srd_s(24, P_V, MB4), srd_s(76, P_SK, 8192)]
        S[1] += lines(f"""s_and_b32 s75, s2, 7
        s_lshl_b32 s75, s75, 1
        s_lshr_b32 s60, s2, 7
        s_add_u32 s75, s75, s60
        s_bfe_u32 s74, s2, 0x40003
        s_lshl_b32 s60, s75, 4
        s_lshl_b32 s61, {sw}, 3
        s_add_u32 s60, s60, s61
        v_lshrrev_b32 v2, 3, v1
        v_add_u32 v2, s60, v2
        s_lshl_b32 s62, s74, 3
        v_and_b32 v3, 7, v1
        v_add_u32 v172, s62, v3
        v_lshlrev_b32 v173, 4, v172
        v_lshl_add_u32 v173, v2, 14, v173
        v_subrev_u32 v174, 6144, v173
        v_lshlrev_b32 v172, 6, v172
        s_movk_i32 s64, 4096
        s_movk_i32 s65, 8192
        s_movk_i32 s66, 12288
        v_sub_u32 v175, 255, v2
        v_lshlrev_b32 v175, 6, v175
        v_and_b32 v2, 3, v3
        v_lshl_add_u32 v175, v2, 4, v175
        v_lshrrev_b32 v2, 2, v3
        v_lshl_add_u32 v175, v2, 17, v175
        s_lshl_b32 s61, s74, 18
        v_add_u32 v175, s61, v175""")
        ld = [f"buffer_load_dwordx4 {vr(TR+4*j,4)}, v172, s[76:79], 0 offen offset:{16*j}" for j in range(4)]
        ld += [f"buffer_load_dwordx4 {vr(KR+4*r,4)}, v174, s[16:19], {so[r//2]} offen offset:{(r%2)*2048} {O.nt}" for r in range(3)]
        ld += [f"buffer_load_dwordx4 {vr(KR+12+4*r,4)}, v173, s[16:19], {so[r//2]} offen offset:{(r%2)*2048} {O.nt}" for r in range(8)]
        ld += [f"buffer_load_dwordx4 {vr(VR+4*r,4)}, v173, s[24:27], {so[r//2]} offen offset:{(r%2)*2048} {O.nt}" for r in range(8)]
        for c in range(O.kvs):
            S[O.kvl + c].append(("tail", [f"s_cmp_lg_u32 s35, {c}\ns_cbranch_scc1 L_kvskip{c}\n" + "\n".join(ld) + f"\nL_kvskip{c}:"]))
        assert O.kv0 >= O.kvl + O.kvs + 1
        S[1].insert(0, f"s_lshr_b32 s35, s2, 3\ns_and_b32 s35, s35, {O.kvs-1}")
        calc = [("waitolder", f"d{O.kvl + O.kvs}")]
        for e in range(4):
            for j in range(4):
                for c in range(2):
                    src = TR + 4*e + 2*c + j//2
                    calc.append(f"v_lshlrev_b32 v{TW+2*j+c}, 16, v{src}" if j % 2 == 0 else f"v_and_b32 v{TW+2*j+c}, 0xffff0000, v{src}")
            for r in range(11): calc += [f"v_lshlrev_b32 v{KU+2*r}, 16, v{KR+4*r+e}", f"v_and_b32 v{KU+2*r+1}, 0xffff0000, v{KR+4*r+e}"]
            for r in range(8): calc += [f"v_lshlrev_b32 v{VU+2*r}, 16, v{VR+4*r+e}", f"v_and_b32 v{VU+2*r+1}, 0xffff0000, v{VR+4*r+e}"]
            for r in range(8):
                t = 176 + 2*(r % 2)
                for c in range(2): calc.append(f"v_mul_f32 v{t+c}, v{KU+2*r+c}, v{TW+6+c}")
                for j in (2, 1, 0):
                    for c in range(2): calc.append(f"v_fmac_f32 v{t+c}, v{KU+2*(r+3-j)+c}, v{TW+2*j+c}")
                for c in range(2): calc.append(f"v_mul_f32 v{VU+2*r+c}, v{t+c}, v{VU+2*r+c}")
            o = OUT + (e % 2)*8
            for c in range(2):
                for q in range(4): calc.append(f"v_cvt_pk_bf16_f32 v{o+4*c+q}, v{VU+2*(7-2*q)+c}, v{VU+2*(6-2*q)+c}")
            for c in range(2):
                calc.append(("vm", "kvst", f"s_mov_b32 s60, {(2*e+c)*16384}\nbuffer_store_dwordx4 {vr(o+4*c,4)}, v175, s[20:23], s60 offen sc1"))
        for k, seg in enumerate(split(calc, O.kvn)): S[O.kv0 + k] += seg
        S[O.kv0 + O.kvn + 1] += [("wait", "kvst"), ("vm", "fl", f"""s_lshl_b32 s61, s74, 8
        s_lshl_b32 s60, s75, 4
        s_add_u32 s61, s61, s60
        s_lshl_b32 s60, {sw}, 3
        s_add_u32 s61, s61, s60
        s_add_u32 s61, s61, {F_KV}
        """ + set_flag_s("s61"))]
    else:
        SR, X = 16, 48
        S[1] += [srd_s(16, P_WS, ST_BYTES, WS_ST), srd_s(20, P_WS, CS_BYTES, WS_CS)]
        S[O.stl] += lines(f"""s_lshl_b32 s60, s2, 3
        s_lshl_b32 s61, {sw}, 2
        s_add_u32 s60, s60, s61
        v_lshrrev_b32 v2, 4, v1
        v_add_u32 v2, s60, v2
        v_and_b32 v3, 15, v1
        v_lshlrev_b32 v3, 4, v3
        v_lshl_add_u32 v120, v2, 11, v3""")
        S[O.stl].append(("tail", [("vm", "st", f"buffer_load_dwordx4 {vr(SR+4*j,4)}, v120, s[8:11], 0 offen offset:{j*256}") for j in range(8)]))
        def rowsum(reg):
            out = ["v_add_f32 v112, v112, v113", "v_add_f32 v114, v114, v115", f"v_add_f32 v{reg}, v112, v114"]
            out += [f"s_nop 1\nv_add_f32_dpp v{reg}, v{reg}, v{reg} row_ror:{r} row_mask:0xf bank_mask:0xf" for r in (8, 4, 2, 1)]
            return out + [f"v_mul_f32 v{reg}, {f32(1/1024)}, v{reg}"]
        c = [("wait", "st")]
        for j in range(32): c += [f"v_lshlrev_b32 v{X+2*j}, 16, v{SR+j}", f"v_and_b32 v{X+2*j+1}, 0xffff0000, v{SR+j}"]
        for q in range(4): c.append(f"v_add_f32 v{112+q}, v{X+q}, v{X+4+q}")
        for j in range(8, 64): c.append(f"v_add_f32 v{112+j%4}, v{112+j%4}, v{X+j}")
        c += rowsum(116)
        for j in range(64):
            c.append(f"v_sub_f32 v{X+j}, v{X+j}, v116")
        for q in range(4): c.append(f"v_mul_f32 v{112+q}, v{X+q}, v{X+q}")
        for j in range(4, 64): c.append(f"v_fmac_f32 v{112+j%4}, v{X+j}, v{X+j}")
        c += rowsum(117)
        c += lines(f"""v_cvt_pk_bf16_f32 v112, v116, v117
        v_lshlrev_b32 v116, 16, v112
        v_and_b32 v117, 0xffff0000, v112
        v_add_f32 v117, {f32(1e-5)}, v117
        v_cvt_pk_bf16_f32 v117, v117, v117
        v_lshlrev_b32 v117, 16, v117
        v_sqrt_f32 v117, v117
        v_mov_b32 v118, s{TAG}
        v_cvt_pk_bf16_f32 v117, v117, v117
        v_lshlrev_b32 v117, 16, v117
        v_mov_b32 v119, s{TAG+1}
        v_and_b32 v2, 48, v1""")
        c.append(("vm", "stst", f"""s_lshl_b32 s60, s2, 7
        s_lshl_b32 s61, {sw}, 6
        s_add_u32 s60, s60, s61
        s_mov_b32 exec_lo, 0x00010001
        s_mov_b32 exec_hi, 0x00010001
        buffer_store_dwordx4 v[116:119], v2, s[16:19], s60 offen sc1
        s_mov_b64 exec, -1"""))
        for k, seg in enumerate(split(c, O.stn)): S[O.st0 + k] += seg
        lk = f"buffer_load_dwordx2 v[16:17], v122, {sr(FS,4)}, s74 offen sc1"
        lc = f"buffer_load_dwordx2 v[18:19], v122, {sr(FS,4)}, s75 offen sc1"
        S[13] += [poll_addr_s(122, 32, "v1"),
                  f"s_lshr_b32 s74, s2, 4\ns_lshl_b32 s74, s74, 8\ns_add_u32 s74, s74, {F_KV}\ns_lshl_b32 s75, s5, 8\ns_add_u32 s75, s75, {F_CS}"]
        ls = f"buffer_load_dwordx4 v[24:27], v124, s[16:19], s66 offen sc1"
        g = lines(f"""v_and_b32 v2, 31, v1
        v_min_u32 v123, 27, v2
        v_lshrrev_b32 v3, 5, v1
        s_mov_b32 s60, {8*3584*4}
        v_mul_lo_u32 v3, v3, s60
        v_lshl_add_u32 v125, v123, 4, v3
        s_mul_i32 s65, s5, {224*4}
        s_mul_i32 s61, {sw}, {112*4}
        s_add_u32 s65, s65, s61
        s_lshl_b32 s66, s4, 11
        s_lshl_b32 s60, {sw}, 10
        s_add_u32 s66, s66, s60
        v_lshlrev_b32 v124, 4, v1""")
        S[14] += g + [("tail", [("vm", "pc", lc)])]
        S[15] += [("tail", [("wait", "pc"), recheck_s(A, lc, f"v_cmp_ne_u64 vcc, {sr(TAG,2)}, v[18:19]", 4)] +
                      [("vm", "ga", f"buffer_load_dwordx4 {vr(32+4*j,4)}, v125, s[20:23], s65 offen sc1\ns_add_u32 s65, s65, {3584*4}") for j in range(8)])]
        S[16] += [("vm", "ga", ls)]
        f = [("wait", "ga"), recheck_s(A, ls, f"v_cmp_ne_u64 vcc, {sr(TAG,2)}, v[26:27]", 8), "v_rcp_f32 v27, v25"]
        for j in range(1, 8): f += [f"v_add_f32 v{32+q}, v{32+q}, v{32+4*j+q}" for q in range(4)]
        f += [f"v_mov_b32 v{36+q}, v{32+q}" for q in range(4)] + [f"v_mul_f32 v26, {f32(-LOG2E)}, v27\ns_nop 0"]
        f += [f"v_permlane32_swap_b32 v{32+q}, v{36+q}" for q in range(4)]
        f += lines(f"""s_mul_i32 s61, {sw}, {112*4}
        s_add_u32 s61, s61, {L_CS}
        v_add_f32 v32, v32, v36
        v_add_f32 v33, v33, v37
        v_add_f32 v34, v34, v38
        v_add_f32 v35, v35, v39
        v_lshl_add_u32 v123, v123, 4, s61
        s_lshl_b32 s60, {sw}, 10
        s_add_u32 s60, s60, {L_ST}
        v_add_u32 v124, s60, v124
        ds_write_b128 v123, v[32:35]
        ds_write_b128 v124, v[24:27]""")
        S[17] += f
    if O.noside:
        S = {j: [] for j in range(1, 18)}
    pf = {j: [] for j in range(1, 17)}
    if O.pf_w2:
        for q in range(4*(16 - O.pf0)): pf[O.pf0 + q//4].append(f"s_load_dwordx2 s[82:83], s[80:81], {q*128+60}")
    if O.tlb:
        t = f"s_andn2_b32 s60, s2, 7\ns_lshr_b32 s60, s60, 1\ns_add_u32 s60, s60, s33\ns_lshl_b32 s61, s60, 18\n"
        for q in range(4): t += f"s_load_dword s82, s[{P_WS}:{P_WS+1}], s61 offset:{q*65536}\n"
        t += "s_lshl_b32 s61, s60, 15\n"
        for p in (P_K, P_V, P_SSM, P_OUT): t += f"s_load_dword s82, s[{p}:{p+1}], s61\n"
        t += f"s_mul_i32 s61, s60, 57344\ns_load_dword s82, s[{P_W2}:{P_W2+1}], s61"
        pf[O.tlb].append(t)
    if O.ssm < 16: S[O.ssm].append(("tail", conv_load_h_items()))
    for j in range(1, 16):
        body = pf[j] + [x for x in S[j] if not (isinstance(x, tuple) and x[0] == "tail")]
        tail = [y for x in S[j] if isinstance(x, tuple) and x[0] == "tail" for y in x[1]]
        P.merge(dma_items(j), body)
        for x in tail: P.emit(x)
        if j == 1: A("s_waitcnt lgkmcnt(0)\n" + get_tag_s())
        if kind == "B" and not O.noside and O.kvl <= j <= O.kvl + O.kvs:
            idx = max(i for i, t in enumerate(P.q) if t == f"d{j-1}")
            A(f"s_add_u32 s60, s35, {(1 - (j - O.kvl)) & 0xffffffff}\ns_cmp_gt_u32 s60, 1\ns_waitcnt vmcnt({len(P.q) - 1 - idx + 23})\ns_cbranch_scc0 L_kvw{j}")
            P.emit(("wait", f"d{j-1}"))
            A(f"L_kvw{j}:")
        else:
            P.emit(("wait", f"d{j-1}"))
        A("s_barrier")
        if kind == "B" and O.lst: stamp(A, 16 + j - 1)
    if O.ssm == 16:
        for x in conv_load_h_items(): P.emit(x)
    for x in S[16]: P.emit(x)
    P.emit(("wait", "d15"))
    A("s_barrier")
    for x in S[17]: P.emit(x)

RB = [0, 32768, CBASE, CBASE + 32768]
def helper_tail(A):
    cw = "s33"
    A("L_conv_start:")
    stamp(A, 5)
    U, H = CU_, CH_
    B2, H0 = 48, 64
    AA, BA = 14, 15
    ACC = 16; SA = [48, 96]; SB = [80, 128]; KV = 144
    VD1, VD2 = 200, 204
    P = Prog(A)
    lk = f"buffer_load_dwordx2 v[208:209], v210, {sr(FS,4)}, s74 offen sc1"
    A(f"""s_lshr_b32 s74, s2, 4
    s_lshl_b32 s74, s74, 8
    s_add_u32 s74, s74, {F_KV}
    {poll_addr_s(210, 32, "v1")}
    {lk}
    v_lshlrev_b32 v3, 4, v1
    s_mul_i32 s70, {cw}, {CREG}
    s_add_u32 s70, s70, {CBASE}
    v_add_u32 v4, s70, v3
    v_lshrrev_b32 v7, 4, v1
    v_lshl_add_u32 v5, v7, 5, v4
    v_mov_b32 v212, 0
    v_mov_b32 v213, 0
    v_mov_b32 v214, 0
    v_mov_b32 v215, 0""")
    for off in (HA0, HA1, UA + 16*288 - 32, UA + 20*288 - 1024, UB + 16*288 - 32, UB + 20*288 - 1024):
        A(f"ds_write_b128 v4, v[212:215] offset:{off}")
    A("s_waitcnt lgkmcnt(6)\ns_barrier")
    stamp(A, 6)
    A("s_waitcnt vmcnt(0)")
    A(recheck_s(A, lk, f"v_cmp_ne_u64 vcc, {sr(TAG,2)}, v[208:209]", 2))
    for x in conv_load_u_items(): P.emit(x)
    for j in range(4):
        A(f"ds_write_b128 v4, {vr(H+4*j,4)} offset:{HA1 + 256 + j*1024}")
        A(f"v_mov_b32_dpp v12, v{H+4*j+3} wave_shr:1 row_mask:0xf bank_mask:0xf bound_ctrl:0")
        if j > 0: A(f"v_readlane_b32 s61, v{H+4*j-1}, 63\ns_nop 3\nv_writelane_b32 v12, s61, 0")
        A(f"v_alignbit_b32 v{H0+4*j}, v{H+4*j}, v12, 16")
        for q in range(1, 4): A(f"v_alignbit_b32 v{H0+4*j+q}, v{H+4*j+q}, v{H+4*j+q-1}, 16")
        A(f"ds_write_b128 v4, {vr(H0+4*j,4)} offset:{HA0 + 256 + j*1024}")
    srd(A, 16, P_WS, Z_BYTES, WS_Z)
    srd(A, 12, P_W2, W_BYTES)
    srd(A, 8, P_WS, H_BYTES, WS_H)
    A(f"""v_and_b32 v6, 15, v1
    v_lshlrev_b32 v8, 1, v7
    v_xor_b32 v9, v8, v6
    s_and_b32 s76, s5, 8
    v_xor_b32 v9, s76, v9
    v_lshlrev_b32 v9, 4, v9
    v_lshl_add_u32 v9, v7, 11, v9
    s_and_b32 s72, s5, 7
    s_lshl_b32 s62, s72, 8
    s_lshl_b32 s61, s32, 15
    s_add_u32 s62, s62, s61
    v_add_u32 v{VD1}, s62, v9
    v_xor_b32 v9, 128, v{VD1}
    v_add_u32 v{VD1+1}, {8192-1024}, v9
    v_add_u32 v{VD1+2}, {2*(8192-1024)}, v{VD1}
    v_add_u32 v{VD1+3}, {3*(8192-1024)}, v9
    s_lshr_b32 s73, {cw}, 1
    s_lshl_b32 s77, {cw}, 12
    s_lshl_b32 s60, s4, 4
    s_add_u32 s79, s60, s76
    s_mul_i32 s79, s79, {6*8192}
    s_add_u32 s79, s79, s77
    s_lshl_b32 s71, s4, 17
    s_lshl_b32 s60, s32, 12
    s_add_u32 s71, s71, s60
    s_add_u32 s71, s71, {H_SH}
    s_lshl_b32 s78, {cw}, 11
    s_lshl_b32 s60, s76, 4
    s_add_u32 s65, s62, s60
    v_xor_b32 v8, v8, v1
    v_and_b32 v8, 7, v8
    v_lshlrev_b32 v8, 4, v8
    v_lshrrev_b32 v13, 3, v1
    v_lshl_add_u32 v8, v13, 11, v8
    v_add_u32 v{VD2}, s65, v8
    v_add_u32 v{VD2+1}, {16384-1024}, v{VD2}
    v_add_u32 v{AA}, v6, v7
    v_lshl_add_u32 v{AA}, v{AA}, 4, s70
    v_bfe_u32 v8, v1, 2, 2
    v_sub_u32 v9, 3, v8
    v_mul_u32_u24 v9, 288, v9
    v_add_u32 v9, s70, v9
    v_and_b32 v12, 3, v1
    v_lshlrev_b32 v10, 6, v7
    v_lshl_add_u32 v206, v8, 8, v10
    v_lshl_add_u32 v206, v12, 4, v206
    v_lshl_add_u32 v10, v12, 2, v10
    v_sub_u32 v207, v9, v10
    v_lshl_add_u32 v9, v7, 4, v9
    v_and_b32 v10, 1, v1
    v_sub_u32 v10, 1, v10
    v_mul_u32_u24 v10, 5760, v10
    v_bfe_u32 v11, v1, 1, 1
    v_sub_u32 v11, 1, v11
    v_lshlrev_b32 v11, 3, v11
    v_add3_u32 v{BA}, v9, v10, v11
    s_lshr_b32 s60, s67, 16
    s_and_b32 s61, s68, 1
    s_cmp_eq_u32 s61, 1
    s_cselect_b32 s67, s60, s67
    s_lshl_b32 s67, s67, 16""")
    for i in range(32): A(f"v_mov_b32 v{ACC+i}, 0")
    P.emit(("wait", "u"))
    for j in range(4):
        A(f"ds_write_b128 v5, {vr(U+4*j,4)} offset:{UA + j*1152}")
        for q in range(3): A(f"v_mov_b32 v{B2+4*j+q}, v{U+4*j+q+1}")
        A(f"v_mov_b32_dpp v{B2+4*j+3}, v{U+4*j} wave_shl:1 row_mask:0xf bank_mask:0xf bound_ctrl:0")
        if j < 3: A(f"v_readlane_b32 s60, v{U+4*j+4}, 0\ns_nop 3\nv_writelane_b32 v{B2+4*j+3}, s60, 63")
        A(f"ds_write_b128 v5, {vr(B2+4*j,4)} offset:{UB + j*1152}")
    A("s_mov_b32 exec_lo, 0x00010001\ns_mov_b32 exec_hi, 0x00010001")
    for j in range(1, 4):
        A(f"ds_write_b128 v5, {vr(U+4*j,4)} offset:{UA + j*1152 - 32}")
        A(f"ds_write_b128 v5, {vr(B2+4*j,4)} offset:{UB + j*1152 - 32}")
    A(f"""s_mov_b32 exec_lo, 0x00010000
    ds_write_b128 v5, {vr(U,4)} offset:{UA - 32}
    ds_write_b128 v5, {vr(B2,4)} offset:{UB - 32}
    s_mov_b64 exec, -1
    s_waitcnt lgkmcnt(0)""")
    def stsel(j):
        return f"""s_bfe_u32 s60, s{84 + (j % 12)//6}, {(5 << 16) | (5*(j % 6)):#x}
            s_add_u32 s60, s60, {12*(j//12)}
            s_mul_i32 s61, s60, 43
            s_lshr_b32 s61, s61, 7
            s_mul_i32 s63, s61, 3
            s_sub_u32 s60, s60, s63
            s_add_u32 s61, s61, s72
            s_and_b32 s61, s61, 7
            """
    def dma2(j, w=True, h=True, split_pre=False):
        it = []
        if j < 24:
            pre = stsel(j)
            if h: pre += f"""s_mul_i32 s74, s61, 3
            s_add_u32 s74, s74, s60
            {"s_and_b32 s74, s74, 3" if O.fake_h else ""}
            s_lshl_b32 s74, s74, 14
            s_add_u32 s74, s74, s79
            """
            if w: pre += f"""s_lshl_b32 s60, s60, 1
            s_add_u32 s60, s60, s73
            s_add_u32 s61, s61, s76
            s_mul_i32 s61, s61, 7
            s_cmp_ge_u32 s60, 3
            s_addc_u32 s60, s60, s61
            {"s_and_b32 s60, s60, 7" if O.fake_w2 else ""}
            s_lshl_b32 s75, s60, 16
            """
            wl = [(f"s_add_u32 m0, s77, {RB[j % 4]}\ns_nop 0\n" if i == 0 else "") + f"buffer_load_dwordx4 v{VD1+i}, s[12:15], s75 offen offset:{i*1024} lds" for i in range(4)]
        else:
            pre = f"""s_add_u32 s60, s5, s73
            s_add_u32 s60, s60, {2*(j-24)}
            s_and_b32 s60, s60, 15
            s_lshl_b32 s74, s60, 13
            s_add_u32 s74, s74, s71
            s_mul_i32 s60, s60, 7
            s_add_u32 s60, s60, 3
            s_lshl_b32 s75, s60, 16
            """
            wl = [(f"s_add_u32 m0, s78, {RB[j % 4]}\ns_nop 0\n" if i == 0 else "") + f"buffer_load_dwordx4 v{VD2+i}, s[12:15], s75 offen offset:{i*1024} lds" for i in range(2)]
        hl = [(f"s_add_u32 m0, s77, {RB[j % 4] + 16384}\ns_nop 0\n" if i == 0 else "") + f"buffer_load_dwordx4 v3, s[8:11], s74 offen offset:{i*1024} sc1 lds" for i in range(4)]
        l = (hl if h else []) + (wl if w else [])
        if split_pre: return pre, [("vm", f"w{j}", x) for x in l]
        l[0] = pre + l[0]
        return [("vm", f"w{j}", x) for x in l]
    def reads(p, mm, nxt):
        ar = {(a, rho): f"ds_read_b128 {vr(SA[p]+(a*2+rho)*4,4)}, v{AA} offset:{(HA0, HA1)[rho] + 16 + 64*(mm + 4*nxt + 16*a)}"
              for a in range(4) for rho in range(2)}
        br = {e: [f"ds_read_b64 {vr(SB[p]+e*4+2*h,2)}, v{BA} offset:{UA + (12 - 4*e + nxt)*288 + 64*mm + 8*h}" for h in range(2)] for e in range(4)}
        return br[0] + [ar[(0,0)], ar[(0,1)]] + br[1] + br[2] + br[3] + [ar[(a, r)] for a in (1,2,3) for r in range(2)]
    def mfmas(p):
        out = []
        for a in range(4):
            for c in range(a, 4):
                for rho in range(2):
                    d = vr(ACC+(c*2+rho)*4, 4)
                    out.append(f"v_mfma_f32_16x16x32_bf16 {d}, {vr(SA[p]+(a*2+rho)*4,4)}, {vr(SB[p]+(c-a)*4,4)}, {d}")
        return out
    for c in range(4):
        for r in range(4):
            A(f"ds_read_b32 v{KV+c*4+r}, v207 offset:{UA + (12-4*c)*288 + 252 - 16*r}")
    for j in range(2):
        for x in dma2(j, h=False): P.emit(x)
    A("s_waitcnt lgkmcnt(0)")
    for x in reads(0, 0, 0): A(x)
    A(dma2(2, split_pre=True)[0])
    stamp(A, 11)
    A("s_barrier")
    stamp(A, 7)
    A(f"s_setprio {O.cprio}\ns_mov_b32 s64, 0\n.p2align 3\nL_conv_loop:")
    for mm in range(4):
        p = mm % 2
        A("s_waitcnt lgkmcnt(0)\ns_nop 0")
        if mm == 3: A("s_cmp_eq_u32 s64, 3\ns_cbranch_scc1 L_conv_last")
        for x in interleave(mfmas(p), reads(1-p, (mm+1) % 4, 1 if mm == 3 else 0)): A(x)
    A(f"""v_add_u32 v{AA}, 256, v{AA}
    v_add_u32 v{BA}, 288, v{BA}
    s_add_u32 s64, s64, 1
    s_branch L_conv_loop
    L_conv_last:
    s_waitcnt vmcnt(0)""")
    P.done = len(P.q)
    ml = mfmas(1)
    for x in ml[:O.c0pos]: A(x)
    A("s_barrier")
    for x in ml[O.c0pos:]: A(x)
    stamp(A, 8)
    A(f"s_setprio {O.hprio2}")
    S = {k: [] for k in range(0, 33)}
    zc = []
    for c in range(4):
        for r in range(4):
            y0, y1, kv = ACC+(c*2)*4+r, ACC+(c*2+1)*4+r, KV+c*4+r
            zc += lines(f"""v_and_b32 v10, 0xffff0000, v{kv}
            v_lshlrev_b32 v11, 16, v{kv}
            v_fmac_f32 v{y0}, s67, v10
            v_fmac_f32 v{y1}, s67, v11
            v_cvt_pk_bf16_f32 v{kv}, v{y0}, v{y1}""")
        zc.append(("vm", "zst", f"buffer_store_dwordx4 {vr(KV+4*c,4)}, v206, s[16:19], s69 offen offset:{c*1024} sc1"))
    S[0] += ["s_nop 7"] + zc[:42]; S[1] += zc[42:]
    S[4] += [("wait", "zst"), ("vm", "fl", f"s_lshl_b32 s62, s68, 3\ns_add_u32 s62, s62, {F_Z}\n" + set_flag_s("s62"))]
    S[1] += [srd_s(20, P_Q, MB4)] + lines(f"""s_lshl_b32 s65, s72, 2
    s_lshr_b32 s60, s76, 2
    s_add_u32 s65, s65, s60
    s_add_u32 s65, s65, s73
    s_lshl_b32 s64, s4, 7
    s_lshl_b32 s61, s32, 6
    s_add_u32 s64, s64, s61
    s_lshl_b32 s66, s64, 11
    s_lshl_b32 s60, s65, 6
    s_add_u32 s66, s66, s60
    s_mul_i32 s70, s73, 79872
    s_lshl_b32 s60, s32, 12
    s_add_u32 s70, s70, s60
    s_add_u32 s70, s70, 65536""")
    S[2] += lines(f"""v_lshrrev_b32 v4, 3, v1
    v_bfe_u32 v30, v1, 2, 2
    v_lshlrev_b32 v30, 1, v30
    v_and_b32 v31, 1, v1
    v_add_u32 v30, v30, v31
    v_and_b32 v31, 2, v1
    v_lshl_add_u32 v30, v31, 2, v30
    v_lshrrev_b32 v2, 2, v1
    v_and_b32 v5, 3, v1
    v_lshlrev_b32 v9, 4, v5
    v_lshl_add_u32 v16, v2, 11, v9
    v_add_u32 v17, {32768-1024}, v16
    v_add_u32 v18, {2*(32768-1024)}, v16
    v_add_u32 v19, {3*(32768-1024)}, v16
    v_lshlrev_b32 v12, 3, v7
    v_lshl_add_u32 v12, v30, 6, v12
    v_add_u32 v12, s70, v12""")
    S[3] += [("tail", [("vm", "x", (f"s_mov_b32 m0, s70\ns_nop 0\n" if j == 0 else "") + f"buffer_load_dwordx4 v{16+j}, s[20:23], s66 offen offset:{j*1024} lds") for j in range(4)])]
    S[6] += [("wait", "x")] + [f"ds_read_b64 {vr(80+2*(T*4+mt),2)}, v12 offset:{mt*1024 + T*32}" for T in range(2) for mt in range(4)]
    S[7] += [f"s_lshl_b32 s62, s32, 10\ns_add_u32 s62, s62, {L_ST}\nv_lshl_add_u32 v10, v30, 4, s62"] + [f"ds_read_b128 {vr(32+4*mt,4)}, v10 offset:{256*mt}" for mt in range(4)]
    lh = f"buffer_load_dwordx2 v[24:25], v28, {sr(FS,4)}, s66 offen sc1"
    lz = f"buffer_load_dwordx2 v[26:27], v29, {sr(FS,4)}, s67 offen sc1"
    zp = O.zpoll
    S[zp] += [poll_addr_s(28, 64, "v1"), poll_addr_s(29, 32, "v1"), f"s_lshl_b32 s66, s4, 9\ns_add_u32 s66, s66, {F_H}\ns_lshl_b32 s67, s65, 8\ns_add_u32 s67, s67, {F_Z}",
              ("tail", [("vm", "ph", lh), ("vm", "ph", lz)])]
    S[zp+1] += [f"s_lshl_b32 s69, s65, 17\ns_lshl_b32 s62, s64, 1\ns_add_u32 s69, s69, s62"] + lines(f"""v_and_b32 v9, 7, v1
    v_lshlrev_b32 v9, 4, v9
    v_lshl_add_u32 v20, v4, 12, v9
    v_add_u32 v21, {32768-1024}, v20
    v_add_u32 v22, {2*(32768-1024)}, v20
    v_add_u32 v23, {3*(32768-1024)}, v20
    v_lshlrev_b32 v11, 4, v5
    v_lshl_add_u32 v11, v2, 7, v11
    v_add_u32 v11, s70, v11
    s_waitcnt lgkmcnt(0)""")
    S[zp+2] += [("tail", [("wait", "ph"), recheck_s(A, lh, f"v_cmp_ne_u64 vcc, {sr(TAG,2)}, v[24:25]", 8),
                          recheck_s(A, lz, f"v_cmp_ne_u64 vcc, {sr(TAG,2)}, v[26:27]", 8),
                          f"s_or_b32 s60, s2, {cw}\ns_cbranch_scc1 L_noep\ns_mov_b32 s61, {F_EPOCH}\n{set_flag_s('s61')}\nL_noep:"] +
                [("vm", "z", (f"s_mov_b32 m0, s70\ns_nop 0\n" if j == 0 else "") + f"buffer_load_dwordx4 v{20+j}, s[16:19], s69 offen offset:{j*1024} sc1 lds") for j in range(4)])]
    S[zp+5] += [("wait", "z")] + [f"ds_read_b64_tr_b16 {vr(64+2*(T*4+mt),2)}, v11 offset:{T*2048 + (mt//2)*64 + (mt%2)*8}" for T in range(2) for mt in range(4)]
    c = ["s_waitcnt lgkmcnt(0)"]
    for i in range(8):
        st = 32 + 4*(i % 4)
        for h in range(2):
            o = 96 + 4*i + 2*h
            c += lines(f"""v_lshlrev_b32 v56, 16, v{64+2*i+h}
            v_and_b32 v57, 0xffff0000, v{64+2*i+h}
            v_lshlrev_b32 v{o}, 16, v{80+2*i+h}
            v_and_b32 v{o+1}, 0xffff0000, v{80+2*i+h}
            v_sub_f32 v58, v{o}, v{st}
            v_sub_f32 v59, v{o+1}, v{st}
            v_mul_f32 v58, v58, v{st+3}
            v_mul_f32 v59, v59, v{st+3}
            v_fmac_f32 v{o}, v58, v56
            v_fmac_f32 v{o+1}, v59, v57""")
    for k, seg in enumerate(split(c, 8)): S[zp+6+k] += seg
    assert zp + 14 <= 30 and zp + 2 <= 21 and zp >= 8
    S[29] += [f"s_mul_i32 s62, s73, {CBASE}\ns_lshl_b32 s66, s32, 15\ns_add_u32 s62, s62, s66\ns_add_u32 s62, s62, 8192",
              "v_lshl_add_u32 v9, v7, 4, v30", "v_lshl_add_u32 v9, v9, 4, s62"]
    S[30] += [f"ds_write_b128 v9, {vr(96+4*i,4)} offset:{i*1024}" for i in range(8)] + ["s_waitcnt lgkmcnt(0)"]
    for k in range(0, 31):
        body = [x for x in S[k] if not (isinstance(x, tuple) and x[0] == "tail")]
        tail = [y for x in S[k] if isinstance(x, tuple) and x[0] == "tail" for y in x[1]]
        main = dma2(k+2, split_pre=True)[1] if 4 <= k+2 <= 31 else []
        if k == 0: main = dma2(2, split_pre=True)[1] + dma2(3)
        if k == 30: P.emit(("wait", "w31"))
        P.merge(main, body)
        for x in tail: P.emit(x)
        if 4 <= k+3 <= 31: A(dma2(k+3, split_pre=True)[0])
        P.emit(("wait", f"w{k+1}"))
        if k < 30: A("s_barrier")
        if O.lst: stamp(A, 32 + k)
    stamp_end(A)
    A("s_endpgm")
Opt.zpoll = 9

def role_cons(A):
    A("s_and_b32 s34, s3, 1\ns_lshr_b32 s35, s3, 1")
    XA0, XA1, WE, WO, W6, LN = 200, 201, 202, 203, 204, 205
    A(f"""v_mov_b32 v{LN}, v1
    v_lshrrev_b32 v2, 4, v1
    v_bfe_u32 v3, v1, 2, 2
    v_lshl_add_u32 v3, v2, 3, v3
    v_mul_u32_u24 v3, 448, v3
    v_and_b32 v4, 3, v1
    v_lshl_add_u32 v3, v4, 3, v3
    v_add_u32 v3, {XPART}, v3
    v_and_b32 v2, 1, v2
    v_lshlrev_b32 v4, 5, v2
    s_lshl_b32 s60, s35, 8
    v_add_u32 v5, s60, v3
    v_add_u32 v{WE}, v5, v4
    v_sub_u32 v{WO}, v5, v4
    v_xor_b32 v2, s35, v2
    v_lshlrev_b32 v2, 5, v2
    v_add3_u32 v{W6}, v3, v2, 64
    v_add_u32 v{W6}, 128, v{W6}
    v_and_b32 v2, 15, v1
    v_lshrrev_b32 v3, 1, v2
    v_lshrrev_b32 v4, 4, v1
    v_xor_b32 v3, v3, v4
    v_lshlrev_b32 v3, 4, v3
    v_lshl_add_u32 v3, v2, 7, v3
    s_lshl_b32 s60, s34, 13
    v_add_u32 v{XA0}, s60, v3
    v_xor_b32 v{XA1}, 64, v{XA0}""")
    for i in range(112): A(f"v_mov_b32 v{i}, 0")
    ONE, CA = 244, 216
    for q in range(4): A(f"v_mov_b32 v{ONE+q}, 0x3f803f80")
    srd(A, 16, P_WS, CS_BYTES, WS_CS)
    A(f"""s_mov_b32 s68, s88
    s_add_u32 s69, s68, 2
    s_mul_i32 s60, s89, {3584*4}
    s_mul_i32 s61, s5, {224*4}
    s_add_u32 s60, s60, s61
    s_lshl_b32 s70, s35, 9
    s_add_u32 s70, s70, s60
    s_lshl_b32 s71, s35, 6
    s_add_u32 s71, s71, s60
    v_and_b32 v206, 48, v{LN}
    s_cmp_eq_u32 s34, 0
    s_cselect_b32 s68, s68, 100
    s_cselect_b32 s69, s69, 100
    s_waitcnt lgkmcnt(0)""")
    A(get_tag_s())
    SW = [112, 156]; SX = [140, 184]
    def w_reads(dst, step, ft):
        out = []
        for hh in range(2):
            off = (32*step + 4*hh)*448
            if ft < 6: out.append(f"ds_read_b64_tr_b16 {vr(dst+hh*2,2)}, v{WE if ft%2==0 else WO} offset:{off+ft*32}")
            else: out.append(f"ds_read_b64_tr_b16 {vr(dst+hh*2,2)}, v{W6} offset:{off}")
        return out
    def reads(p, step):
        xa = XA0 if step == 0 else XA1
        xr = [f"ds_read_b128 {vr(SX[p]+4*mt,4)}, v{xa} offset:{mt*2048}" for mt in range(4)]
        wr = [w_reads(SW[p]+4*ft, step, ft) for ft in range(7)]
        return [xr[0]] + wr[0] + xr[1:] + [x for l in wr[1:] for x in l]
    def mfmas(p):
        return [f"v_mfma_f32_16x16x32_bf16 {vr((ft*4+mt)*4,4)}, {vr(SW[p]+4*ft,4)}, {vr(SX[p]+4*mt,4)}, {vr((ft*4+mt)*4,4)}"
                for ft in range(7) for mt in range(4)]
    d = [SLOTS[1]-SLOTS[0], SLOTS[2]-SLOTS[1], SLOTS[0]-SLOTS[2]]
    A(f"""s_mov_b32 s74, 0
    s_mov_b32 s76, {d[0]}
    s_mov_b32 s78, {d[1]}
    s_mov_b32 s79, {d[2] & 0xffffffff}""")
    stamp(A, 1)
    A("s_setprio 2\ns_barrier")
    stamp(A, 2); stamp_cyc(A, 16)
    for x in reads(0, 0): A(x)
    A(".p2align 6\nL_cloop:\ns_waitcnt lgkmcnt(0)")
    adv = [f"v_add_u32 v{r}, s76, v{r}" for r in (XA0, XA1, WE, WO, W6)]
    rot = ["s_cmp_eq_u32 s74, s69\ns_cbranch_scc1 L_c_fl\nL_c_flback:", "s_mov_b32 s61, s76\ns_mov_b32 s76, s78", "s_mov_b32 s78, s79\ns_mov_b32 s79, s61",
           "s_add_u32 s74, s74, 1", "s_cmp_lt_u32 s74, 16"]
    for x in interleave(mfmas(0), reads(1, 1) + adv + ["s_cmp_eq_u32 s74, s68"]): A(x)
    A("s_waitcnt lgkmcnt(0)\ns_barrier\ns_cbranch_scc1 L_c_cs\nL_c_csback:")
    for x in interleave(mfmas(1), reads(0, 0) + rot): A(x)
    A(f"s_cbranch_scc1 L_cloop\ns_setprio {O.epi_prio}")
    stamp(A, 3); stamp_cyc(A, 17)
    srd(A, 8, P_WS, H_BYTES, WS_H)
    ST, CS, T0, OUT, SS = 112, 128, 156, 172, 188
    A(f"""v_and_b32 v207, 15, v{LN}
    v_lshlrev_b32 v207, 4, v207
    s_lshl_b32 s60, s34, 10
    s_add_u32 s60, s60, {L_ST}
    v_add_u32 v207, s60, v207
    s_lshl_b32 s60, s35, 9
    s_add_u32 s60, s60, {L_CS}
    v_add_u32 v208, s60, v206
    s_lshl_b32 s60, s35, 6
    s_add_u32 s60, s60, {L_CS + 384}
    v_add_u32 v209, s60, v206""")
    for mt in range(4): A(f"ds_read_b128 {vr(ST+4*mt,4)}, v207 offset:{mt*256}")
    for ft in range(6): A(f"ds_read_b128 {vr(CS+4*ft,4)}, v208 offset:{ft*64}")
    A(f"ds_read_b128 {vr(CS+24,4)}, v209")
    A(f"""s_lshl_b32 s60, s4, 4
    s_add_u32 s60, s60, s5
    s_lshl_b32 s64, s60, 13
    s_add_u32 s64, s64, {H_SH}
    s_lshl_b32 s61, s35, 10
    s_add_u32 s64, s64, s61
    s_lshl_b32 s65, s34, 12
    s_add_u32 s64, s64, s65
    s_mul_i32 s60, s60, 6
    s_mul_i32 s61, s35, 3
    s_add_u32 s60, s60, s61
    s_lshl_b32 s61, s60, 13
    s_add_u32 s61, s61, s65
    s_add_u32 s62, s61, 8192
    s_add_u32 s63, s61, 16384
    v_lshlrev_b32 v206, 4, v{LN}""")
    if O.pfw2g:
        srd(A, 12, P_W2, W_BYTES)
        A(f"s_lshl_b32 s66, s2, 2\ns_add_u32 s66, s66, s3\ns_mul_i32 s66, s66, 7168\ns_add_u32 s67, s66, 4096")
        for i in range(7): A(f"buffer_load_dwordx4 {vr(216+4*i,4)}, v206, s[12:15], s{66 + i//4} offen offset:{(i%4)*1024}")
    A("s_waitcnt lgkmcnt(0)")
    if O.epk:
        for mt in range(4): A(f"v_mov_b32 v{SS+2*mt}, v{ST+4*mt+1}")
    else:
        for mt in range(4): A(f"v_sub_f32 v{ST+4*mt}, 0, v{ST+4*mt}")
    A(".p2align 3")
    def silu2(tiles):
        if not O.epk:
            for ft, mt, dst, t in tiles:
                for q in range(4): A(f"v_fmac_f32 v{(ft*4+mt)*4+q}, v{CS+4*ft+q}, v{ST+4*mt}")
            for ft, mt, dst, t in tiles:
                for q in range(4): A(f"v_mul_f32 v{t+q}, v{(ft*4+mt)*4+q}, v{ST+4*mt+2}")
            for ft, mt, dst, t in tiles:
                for q in range(4): A(f"v_exp_f32 v{t+q}, v{t+q}")
            for ft, mt, dst, t in tiles:
                for q in range(4): A(f"v_fma_f32 v{t+q}, v{t+q}, v{ST+4*mt+1}, v{ST+4*mt+1}")
            for ft, mt, dst, t in tiles:
                for q in range(4): A(f"v_rcp_f32 v{t+q}, v{t+q}")
            for ft, mt, dst, t in tiles:
                for q in range(4): A(f"v_mul_f32 v{t+q}, v{t+q}, v{(ft*4+mt)*4+q}")
            for ft, mt, dst, t in tiles:
                for h in range(2): A(f"v_cvt_pk_bf16_f32 v{dst+h}, v{t+2*h}, v{t+2*h+1}")
            return
        for ft, mt, dst, t in tiles:
            a = (ft*4+mt)*4; st = ST+4*mt; cs = CS+4*ft
            for h in range(2):
                A(f"v_pk_fma_f32 {vr(a+2*h,2)}, {vr(cs+2*h,2)}, {vr(st,2)}, {vr(a+2*h,2)} op_sel_hi:[1,0,1] neg_lo:[1,0,0] neg_hi:[1,0,0]")
        for ft, mt, dst, t in tiles:
            a = (ft*4+mt)*4; st = ST+4*mt
            for h in range(2): A(f"v_pk_mul_f32 {vr(t+2*h,2)}, {vr(a+2*h,2)}, {vr(st+2,2)} op_sel_hi:[1,0]")
        for ft, mt, dst, t in tiles:
            for q in range(4): A(f"v_exp_f32 v{t+q}, v{t+q}")
        for ft, mt, dst, t in tiles:
            for h in range(2):
                A(f"v_pk_fma_f32 {vr(t+2*h,2)}, {vr(t+2*h,2)}, {vr(SS+2*mt,2)}, {vr(SS+2*mt,2)} op_sel_hi:[1,0,0]")
        for ft, mt, dst, t in tiles:
            for q in range(4): A(f"v_rcp_f32 v{t+q}, v{t+q}")
        for ft, mt, dst, t in tiles:
            a = (ft*4+mt)*4
            for h in range(2): A(f"v_pk_mul_f32 {vr(t+2*h,2)}, {vr(t+2*h,2)}, {vr(a+2*h,2)}")
        for ft, mt, dst, t in tiles:
            for h in range(2): A(f"v_cvt_pk_bf16_f32 v{dst+h}, v{t+2*h}, v{t+2*h+1}")
    cnt = 0
    for pr in range(3):
        for mt in range(4):
            o = OUT + 4*(cnt % 4); cnt += 1
            silu2([(2*pr, mt, o, T0), (2*pr+1, mt, o+2, T0+4)])
            A(f"buffer_store_dwordx4 {vr(o,4)}, v206, s[8:11], s{61+pr} offen offset:{mt*1024} sc1")
    for mt in range(0, 4, 2):
        o = OUT + 4*(cnt % 4); cnt += 1
        silu2([(6, mt, o, T0), (6, mt+1, o+2, T0+4)])
        A(f"buffer_store_dwordx4 {vr(o,4)}, v206, s[8:11], s64 offen offset:{mt*1024} sc1")
    stamp(A, 4)
    A("s_barrier")
    SW2 = [64, 96]; SH2 = [80, 112]; WT1, WT2, VH = 192, 196, 198; HI = 48
    PK = 216
    A(f"""s_lshl_b32 s60, s34, 12
    s_add_u32 s60, s60, 16384
    v_add_u32 v{VH}, s60, v206
    v_lshrrev_b32 v209, 2, v{LN}
    v_and_b32 v207, 3, v{LN}
    v_lshlrev_b32 v207, 3, v207
    s_lshl_b32 s60, s35, 6
    v_and_b32 v208, 7, v209
    v_lshlrev_b32 v208, 5, v208
    v_xor_b32 v208, s60, v208
    v_lshl_add_u32 v208, v209, 8, v208
    v_add_u32 v{WT1}, v208, v207
    v_bfe_u32 v208, v{LN}, 3, 2
    v_lshlrev_b32 v208, 5, v208
    v_xor_b32 v208, s60, v208
    v_lshl_add_u32 v208, v209, 7, v208
    v_add_u32 v{WT2}, v208, v207
    v_xor_b32 v{WT1+1}, 32, v{WT1}
    v_xor_b32 v{WT1+2}, 128, v{WT1}
    v_xor_b32 v{WT1+3}, 160, v{WT1}
    v_xor_b32 v{WT2+1}, 32, v{WT2}
    s_lshl_b32 s64, s4, 9
    s_add_u32 s64, s64, {F_H}
    s_lshl_b32 s63, s5, 2
    s_add_u32 s63, s63, s3
    s_lshl_b32 s63, s63, 3
    s_add_u32 s63, s63, s64
    s_waitcnt vmcnt(0)""")
    A(set_flag_s("s63"))
    stamp(A, 5)
    pfg = [f"s_load_dwordx2 s[82:83], s[80:81], {q*128+60}" for q in range(4*(16 - O.pf0), 56)] if O.pf_w2 else []
    A(f"""s_lshl_b32 s60, s2, 2
    s_add_u32 s60, s60, s3
    s_mul_i32 s60, s60, 7168
    s_add_u32 s80, s{P_W2}, s60
    s_addc_u32 s81, s{P_W2+1}, 0""")
    for x in pfg[:12]: A(x)
    for i in range(7): A(f"v_add_u32 v{WT1+HI+i}, {CBASE}, v{WT1+i}")
    for i in range(64): A(f"v_mov_b32 v{i}, 0")
    srd(A, 12, P_WS, PART_BYTES, WS_PART)
    srd(A, 16, P_OUT, MB4)
    A(f"""s_xor_b32 s60, s2, 1
    s_lshl_b32 s60, s60, 2
    s_add_u32 s60, s60, s3
    s_mul_i32 s66, s60, 6144
    s_add_u32 s67, s66, 4096
    s_lshl_b32 s60, s2, 2
    s_add_u32 s60, s60, s3
    s_mul_i32 s68, s60, 6144
    s_add_u32 s69, s68, 4096
    s_mul_i32 s70, s35, {CBASE}
    s_lshl_b32 s60, s34, 15
    s_add_u32 s70, s70, s60
    s_add_u32 s70, s70, 8192
    v_add_u32 v200, s70, v206
    v_and_b32 v201, 15, v{LN}
    v_mul_u32_u24 v201, 80, v201
    v_lshrrev_b32 v202, 4, v{LN}
    v_lshl_add_u32 v201, v202, 3, v201
    v_add_u32 v201, s70, v201
    v_lshlrev_b32 v207, 1, v207
    v_mul_u32_u24 v202, 80, v209
    v_add3_u32 v202, v202, v207, s70
    v_lshl_add_u32 v203, v209, 11, v207
    s_lshl_b32 s65, s4, 18
    s_lshl_b32 s61, s34, 17
    s_add_u32 s65, s65, s61
    s_and_b32 s61, s5, 7
    s_lshl_b32 s61, s61, 8
    s_add_u32 s65, s65, s61
    s_and_b32 s61, s5, 8
    s_lshl_b32 s61, s61, 4
    s_add_u32 s65, s65, s61
    s_lshl_b32 s61, s35, 6
    s_add_u32 s65, s65, s61
    s_and_b32 s76, s5, 8
    s_lshl_b32 s61, s76, 5
    s_add_u32 s64, s64, s61
    s_and_b32 s72, s5, 7
    s_lshl_b32 s77, s3, 12
    s_lshl_b32 s60, s4, 4
    s_add_u32 s79, s60, s76
    s_mul_i32 s79, s79, {6*8192}
    s_add_u32 s79, s79, s77
    {poll_addr_s(254, 32, f"v{LN}")}""")
    lf = f"buffer_load_dwordx2 v[250:251], v254, {sr(FS,4)}, s64 offen sc1"
    A(lf + "\ns_waitcnt vmcnt(0)")
    A(recheck_s(A, lf, f"v_cmp_ne_u64 vcc, {sr(TAG,2)}, v[250:251]", 4))
    stamp(A, 6)
    for j in range(2):
        A(f"""s_bfe_u32 s60, s84, {(5 << 16) | (5*j):#x}
        s_mul_i32 s61, s72, 3
        s_add_u32 s60, s60, s61
        s_cmp_ge_u32 s60, 24
        s_cselect_b32 s61, 24, 0
        s_sub_u32 s60, s60, s61
        s_lshl_b32 s60, s60, 14
        s_add_u32 m0, s77, {RB[j] + 16384}
        s_add_u32 s60, s60, s79""")
        for i in range(4): A(f"buffer_load_dwordx4 v206, s[8:11], s60 offen offset:{i*1024} sc1 lds")
    for x in pfg[12:]: A(x)
    A("s_setprio 2\ns_waitcnt vmcnt(0) lgkmcnt(0)")
    stamp(A, 11)
    A("s_barrier")
    stamp(A, 7); stamp_cyc(A, 18)
    def reads2(p, slot, step, ph2):
        hi = HI*(slot // 2); so = (slot % 2)*32768
        hr = [f"ds_read_b128 {vr(SH2[p]+4*mt,4)}, v{VH+hi} offset:{so + step*8192 + mt*1024}" for mt in range(4)]
        if not ph2:
            wr = [f"ds_read_b64_tr_b16 {vr(SW2[p]+4*T+2*hh,2)}, v{WT1+hi+T} offset:{so + step*8192 + hh*4096}" for T in range(4) for hh in range(2)]
            return wr[:2] + hr + wr[2:]
        wr = [f"ds_read_b64_tr_b16 {vr(SW2[p]+4*T+2*hh,2)}, v{WT2+hi+T} offset:{so + step*4096 + hh*2048}" for T in range(2) for hh in range(2)]
        return hr + wr
    def mfmas2(p, nT):
        return [f"v_mfma_f32_16x16x32_bf16 {vr((T*4+mt)*4,4)}, {vr(SW2[p]+4*T,4)}, {vr(SH2[p]+4*mt,4)}, {vr((T*4+mt)*4,4)}"
                for T in range(nT) for mt in range(4)]
    def phase(mf, rd, nprev, extra=(), pre=""):
        k = 0; e = 0
        for i, m in enumerate(mf):
            if i % 4 == 0:
                need = 6 + 2*(i//4)
                if pre and i == 0:
                    A(f"s_waitcnt lgkmcnt({nprev - 4})"); A(pre)
                A(f"s_waitcnt lgkmcnt({nprev - need + k})")
            A(m)
            if k < len(rd): A(rd[k]); k += 1
            elif e < len(extra): A(extra[e]); e += 1
        while e < len(extra): A(extra[e]); e += 1
    for x in reads2(0, 0, 0, False): A(x)
    A("s_mov_b32 s75, 0\n.p2align 3\nL_g1_loop:")
    for sl in range(4):
        phase(mfmas2(0, 4), reads2(1, sl, 1, False), 12, ["s_add_u32 s75, s75, 1\ns_cmp_eq_u32 s75, 6"] if sl == 3 else [])
        A("s_barrier")
        if sl == 3: A("s_cbranch_scc1 L_g1_last")
        phase(mfmas2(1, 4), reads2(0, (sl+1) % 4, 0, False), 12)
    A("s_branch L_g1_loop\nL_g1_last:")
    phase(mfmas2(1, 4), reads2(0, 0, 0, True), 12)
    stamp(A, 8); stamp_cyc(A, 19)
    pack = []
    for gq in range(6):
        t = ""
        for q in range(3):
            k = gq*3 + q
            if k < 16: t += f"v_cvt_pk_bf16_f32 v{PK+4*gq+q}, v{32+2*k}, v{33+2*k}\n"
        t += f"v_mov_b32 v{PK+4*gq+3}, s{TAG}\n"
        t += f"buffer_store_dwordx4 {vr(PK+4*gq,4)}, v206, s[12:15], {'s66' if gq < 4 else 's67'} offen offset:{(gq%4)*1024} sc1"
        pack.append(t)
    PL = 128
    pl = [f"buffer_load_dwordx4 {vr(PL+4*gq,4)}, v206, s[12:15], {'s68' if gq < 4 else 's69'} offen offset:{(gq%4)*1024} sc1" for gq in range(6)]
    E = 160
    for j in range(8):
        sl = j % 4
        for ph in range(2):
            step = 2*j + ph
            b = SH2[ph]
            sw_ = f"v_swap_b32 v{b+2}, v{b+4}\nv_swap_b32 v{b+3}, v{b+5}\nv_swap_b32 v{b+10}, v{b+12}\nv_swap_b32 v{b+11}, v{b+13}\ns_nop 0"
            extra = []
            if step == 0: extra += pack
            if step == O.pl_step: extra += pl
            if ph == 1 and j < 7: A("s_barrier")
            rd = reads2(1, sl, 1, True) if ph == 0 else (reads2(0, (sl+1) % 4, 0, True) if j < 7 else [f"ds_read_b128 {vr(E+4*i,4)}, v200 offset:{i*1024}" for i in range(8)])
            phase(mfmas2(ph, 2), rd, 8, extra, pre=sw_)
    stamp(A, 9); stamp_cyc(A, 20)
    A("s_waitcnt vmcnt(0)")
    cmp = f"""v_xor_b32 v70, s{TAG}, v{PL+3}
    v_xor_b32 v71, s{TAG}, v{PL+7}
    v_xor_b32 v72, s{TAG}, v{PL+11}
    v_or3_b32 v70, v70, v71, v72
    v_xor_b32 v71, s{TAG}, v{PL+15}
    v_xor_b32 v72, s{TAG}, v{PL+19}
    v_or3_b32 v70, v70, v71, v72
    v_xor_b32 v71, s{TAG}, v{PL+23}
    v_or_b32 v70, v70, v71
    v_cmp_ne_u32 vcc, 0, v70"""
    A(recheck_s(A, "\n".join(pl), cmp, 1))
    A("s_waitcnt lgkmcnt(0)")
    stamp(A, 10)
    for i in range(8):
        T, mt = i // 4, i % 4
        for h in range(2):
            k = 2*i + h
            pr = PL + 4*(k // 3) + k % 3
            A(f"""v_lshlrev_b32 v74, 16, v{pr}
            v_and_b32 v75, 0xffff0000, v{pr}
            v_pk_add_f32 {vr(2*k,2)}, {vr(2*k,2)}, {vr(E+2*k,2)}
            v_pk_add_f32 {vr(2*k,2)}, {vr(2*k,2)}, v[74:75]
            v_cvt_pk_bf16_f32 v{80+k}, v{2*k}, v{2*k+1}""")
        A(f"ds_write_b64 v201, {vr(80+2*i,2)} offset:{mt*16*80 + T*32}")
    A("s_waitcnt lgkmcnt(0)")
    for j in range(4): A(f"ds_read_b128 {vr(96+4*j,4)}, v202 offset:{j*16*80}")
    for j in range(4):
        A(f"s_waitcnt lgkmcnt({3-j})\nbuffer_store_dwordx4 {vr(96+4*j,4)}, v203, s[16:19], s65 offen {O.out_sc}\ns_add_u32 s65, s65, {16*2048}")
    stamp_end(A)
    A("s_endpgm\nL_c_cs:")
    for ft in range(7): A(f"v_mfma_f32_16x16x32_bf16 {vr(CA+4*ft,4)}, {vr(SW[0]+4*ft,4)}, {vr(ONE,4)}, 0")
    for ft in range(7): A(f"v_mfma_f32_16x16x32_bf16 {vr(CA+4*ft,4)}, {vr(SW[1]+4*ft,4)}, {vr(ONE,4)}, {vr(CA+4*ft,4)}")
    A("s_mov_b32 exec_lo, 0x00010001\ns_mov_b32 exec_hi, 0x00010001")
    for ft in range(6): A(f"buffer_store_dwordx4 {vr(CA+4*ft,4)}, v206, s[16:19], s70 offen offset:{ft*64} sc1")
    A(f"""s_nop 1
    buffer_store_dwordx4 {vr(CA+24,4)}, v206, s[16:19], s71 offen offset:384 sc1
    s_mov_b64 exec, -1
    s_branch L_c_csback
    L_c_fl:
    s_lshl_b32 s63, s5, 8
    s_lshl_b32 s60, s4, 4
    s_add_u32 s63, s63, s60
    s_lshl_b32 s60, s35, 3
    s_add_u32 s63, s63, s60
    s_add_u32 s63, s63, {F_CS}
    s_waitcnt vmcnt(0)
    {set_flag_s("s63")}
    s_branch L_c_flback""")

def order1(r):
    c = r & 3
    key = {}
    for s in range(16):
        k = float(s)
        if O.order == 2 and s % 4 == c: k = s - O.lead_d - 0.5
        if s == r: k = min(k, ((r*O.lead_mul) >> 4) - 0.75)
        key[s] = k
    return sorted(range(16), key=lambda s: key[s])
def order2(c):
    key = {s: (s - O.lead_d - 0.5 if (O.g2lead and s % 4 == c) else float(s)) for s in range(12)}
    return sorted(range(12), key=lambda s: key[s])

def gen():
    A = Asm()
    A(f"""s_cmp_ge_u32 s2, 256
    s_cbranch_scc1 L_end
    {"s_lshr_b32 s6, s2, 3" if O.badmap else ""}
    {"s_and_b32 s6, s6, 7" if O.badmap else ""}
    {"s_xor_b32 s2, s2, s6" if O.badmap else ""}
    s_load_dwordx16 s[36:51], s[0:1], 0
    s_load_dwordx8 s[52:59], s[0:1], 64
    s_and_b32 s6, s2, 7
    s_lshr_b32 s7, s2, 3
    s_lshr_b32 s4, s6, 1
    s_lshl_b32 s4, s4, 2
    s_lshr_b32 s5, s7, 3
    s_add_u32 s4, s4, s5
    s_and_b32 s5, s6, 1
    s_lshl_b32 s5, s5, 3
    s_and_b32 s7, s7, 7
    s_add_u32 s5, s5, s7
    s_add_u32 s6, s4, s5
    s_and_b32 s6, s6, 3
    s_and_b32 s7, s4, 12
    s_and_b32 s60, s5, 12
    s_add_u32 s7, s7, s60
    s_and_b32 s7, s7, 12
    s_add_u32 s6, s6, s7
    s_lshl_b32 s6, s6, 4
    s_and_b32 s7, s4, 3
    s_lshl_b32 s7, s7, 3
    s_getpc_b64 s[60:61]
    L_pc:
    s_add_u32 s60, s60, L_table - L_pc
    s_addc_u32 s61, s61, 0
    s_load_dwordx2 s[{PERM}:{PERM+1}], s[60:61], s6
    s_load_dwordx2 s[88:89], s[60:61], s6 offset:8
    s_load_dwordx2 s[84:85], s[60:61], s7 offset:256
    v_lshrrev_b32 v2, 6, v0
    v_and_b32 v1, 63, v0
    v_readfirstlane_b32 s3, v2
    s_waitcnt lgkmcnt(0)""")
    stamp_init(A)
    srd(A, FS, P_WS, FL_BYTES, WS_FL)
    A(f"""s_load_dwordx2 s[96:97], s[{FS}:{FS+1}], {F_EPOCH}
    s_cmp_lt_u32 s3, 4
    s_cbranch_scc1 L_cons""")
    helper_head(A)
    A("s_cmp_lt_u32 s3, 6\ns_cbranch_scc1 L_progA")
    helper_phase1(A, "B")
    A("s_branch L_conv_start\nL_progA:")
    helper_phase1(A, "A")
    helper_tail(A)
    A("L_cons:"); role_cons(A)
    A("L_end:\ns_endpgm\n.p2align 6\n.type L_table,@object\nL_table:")
    for r in range(16):
        o = order1(r); v = sum(s << (4*j) for j, s in enumerate(o))
        assert o.index(r) <= 8
        A(f".long {v & 0xffffffff:#x}, {v >> 32:#x}, {o.index(r)}, {r}")
    for c in range(4):
        o = order2(c)
        A(f".long {sum(s << (5*j) for j, s in enumerate(o[:6])):#x}, {sum(s << (5*j) for j, s in enumerate(o[6:])):#x}")
    A(".size L_table, 288")
    HEAD = open("cdna_kernels/" + NAME + ".s.ref").read().split("; Override")[0]
    hdr = HEAD + f"""; @launch grid=(256,1,1) block=(512,1,1) lds={LDS_TOTAL}
.amdgcn_target "amdgcn-amd-amdhsa--gfx950"
.text
"""
    return hdr + kernel(NAME + "_kernel", A.text(), 256, sgpr=100)

if __name__ == "__main__":
    out = "cdna_kernels/" + NAME + ".s"
    for a in sys.argv[1:]:
        if a == "--stamps": O.stamps = True
        elif "=" in a:
            k, v = a.split("=")
            setattr(O, k, int(v) if v.lstrip("-").isdigit() else v)
        else: out = a
    open(out, "w").write(gen())
```

```python
import sys
import g7
from base import *
base = g7.gen()
K = g7.NAME + "_kernel"
main = f"; @launch kernel={K} grid=(256,1,1) block=(512,1,1) lds={g7.LDS_TOTAL}"
def mk(path, pre_lines, extra=""):
    lines = base.split("\n")
    i = [k for k, l in enumerate(lines) if l.startswith("; @launch")][0]
    lines[i:i+1] = pre_lines
    open(path, "w").write("\n".join(lines) + extra)
d = "cdna_kernels/"
mk(d + "va.s", [main])
mk(d + "vb.s", [main, main])
cw = f"""s_getpc_b64 s[4:5]
L_cw:
s_sub_u32 s4, s4, L_cw - {K}
s_subb_u32 s5, s5, 0
v_lshlrev_b32 v1, 4, v0
"""
for i in range(9): cw += f"global_load_dwordx4 v[4:7], v1, s[4:5]\nv_add_u32 v1, 4096, v1\n"
cw += "s_waitcnt vmcnt(0)\ns_endpgm\n"
mk(d + "vc.s", ["; @launch kernel=cw_kernel grid=(256,1,1) block=(256,1,1) lds=0", main], kernel("cw_kernel", cw, 16))
def rd(slots):
    t = "s_cmp_ge_u32 s2, 256\ns_cbranch_scc1 L_x\nv_lshlrev_b32 v1, 4, v0\n"
    for off, size in slots:
        per = size // 256
        t += f"s_load_dwordx2 s[4:5], s[0:1], {off}\ns_waitcnt lgkmcnt(0)\ns_mov_b32 s8, s4\ns_mov_b32 s9, s5\ns_mov_b32 s10, {size}\ns_mov_b32 s11, 0x20000\ns_mul_i32 s6, s2, {per}\n"
        for i in range(per // 4096): t += f"buffer_load_dwordx4 v[4:7], v1, s[8:11], s6 offen\ns_add_u32 s6, s6, 4096\n"
    return t + "s_waitcnt vmcnt(0)\nL_x:\ns_endpgm\n"
M = 4 << 20; W = 1024*3584*2
mk(d + "vd.s", ["; @launch kernel=iw_kernel grid=(256,1,1) block=(256,1,1) lds=0", main], kernel("iw_kernel", rd([(0, M), (8, M), (16, M), (32, M), (56, W), (64, W)]), 16))
mk(d + "ve.s", ["; @launch kernel=iw_kernel grid=(256,1,1) block=(256,1,1) lds=0", main], kernel("iw_kernel", rd([(88, 32 << 20), (72, M)]), 16))
mk(d + "vf.s", ["; @launch kernel=e0_kernel grid=(256,1,1) block=(64,1,1) lds=0", main], kernel("e0_kernel", "s_endpgm\n", 8))
```

```python
import sys
from base import *

NAME = "parallel_sum__ssm_conv_h3__dense_activation_silu__prompt"
WS_H, H_BYTES = 0, 2048*3584*2
WS_KVT, KVT_BYTES = 0x1000000, 4 << 20
WS_Z, Z_BYTES = 0x1400000, 4 << 20
WS_ST, ST_BYTES = 0x1800000, 2048*8
WS_CS, CS_BYTES = 0x1810000, 16*3584*4
P_Q, P_K, P_V, P_SK, P_SSM, P_D, P_W1, P_W2, P_OUT, P_DBG, P_WS = 36, 38, 40, 42, 44, 46, 50, 52, 54, 56, 58
MB4 = 4 << 20
W_BYTES = 1024*3584*2
LOG2E = 1.4426950408889634

def f32(x):
    import struct
    return "0x%08x" % struct.unpack("<I", struct.pack("<f", x))[0]

def srd(A, d, p, size, off=0):
    if off:
        A(f"s_add_u32 s{d}, s{p}, {off:#x}\ns_addc_u32 s{d+1}, s{p+1}, 0")
    else:
        A(f"s_mov_b32 s{d}, s{p}\ns_mov_b32 s{d+1}, s{p+1}")
    A(f"s_mov_b32 s{d+2}, {size:#x}\ns_mov_b32 s{d+3}, 0x20000")

STAMPS = False
WS_STAMP = 0x2000000
def stamp(A, i):
    if STAMPS:
        A(f"s_memrealtime s[92:93]\ns_waitcnt lgkmcnt(0)\ns_mov_b32 s{80+i}, s92")
def stamp_init(A):
    if STAMPS:
        for i in range(8): A(f"s_mov_b32 s{80+i}, 0")
        A("s_memtime s[90:91]")
        stamp(A, 0)
def stamp_end(A, kidx):
    if STAMPS:
        A("s_waitcnt vmcnt(0)")
        stamp(A, 6)
        A("s_memtime s[92:93]\ns_waitcnt lgkmcnt(0)\ns_sub_u32 s87, s92, s90")
        srd(A, 8, P_WS, 0x40000, WS_STAMP + kidx*0x40000)
        for i in range(8): A(f"v_mov_b32 v{i}, s{80+i}")
        A("""s_lshl_b32 s60, s2, 3
        s_add_u32 s60, s60, s3
        s_lshl_b32 s60, s60, 5
        v_mov_b32 v8, 0
        s_mov_b64 exec, 1
        buffer_store_dwordx4 v[0:3], v8, s[8:11], s60 offen
        buffer_store_dwordx4 v[4:7], v8, s[8:11], s60 offen offset:16""")

def prologue(A, endlabel, lane="v1"):
    A(f"""s_cmp_ge_u32 s2, 256
    s_cbranch_scc1 {endlabel}
    s_load_dwordx16 s[36:51], s[0:1], 0
    s_load_dwordx8 s[52:59], s[0:1], 64
    v_lshrrev_b32 v2, 6, v0
    v_and_b32 {lane}, 63, v0
    v_readfirstlane_b32 s3, v2
    s_and_b32 s6, s2, 7
    s_lshr_b32 s7, s2, 3
    s_lshr_b32 s4, s6, 1
    s_lshl_b32 s4, s4, 2
    s_lshr_b32 s5, s7, 3
    s_add_u32 s4, s4, s5
    s_and_b32 s5, s6, 1
    s_lshl_b32 s5, s5, 3
    s_and_b32 s7, s7, 7
    s_add_u32 s5, s5, s7
    s_waitcnt lgkmcnt(0)""")
    stamp_init(A)

SLOT = 45056
XPART = 16384
L_CS = 3*SLOT
L_ST = L_CS + 1024
K1_LDS = L_ST + 2048

def loader_addr_x(A, lw, vx, lane="v1"):
    A(f"""v_lshrrev_b32 v2, 3, {lane}
    v_lshrrev_b32 v3, 4, {lane}
    v_xor_b32 v3, v3, {lane}
    v_and_b32 v3, 7, v3
    v_lshlrev_b32 v3, 4, v3
    v_lshl_add_u32 v3, v2, 11, v3
    s_lshl_b32 s60, s4, 18
    s_lshl_b32 s61, {lw}, 17
    s_add_u32 s60, s60, s61
    v_add_u32 v{vx}, s60, v3
    v_xor_b32 v3, 64, v{vx}""")
    for i in range(1, 8):
        src = "v3" if i & 1 else f"v{vx}"
        A(f"v_add_u32 v{vx+i}, {i*16384 - (i%4)*1024}, {src}")

def loader_addr_w(A, lw, vw, nreg, lane="v1"):
    A(f"""s_mul_i32 s60, {nreg}, 448
    s_mul_i32 s61, {lw}, {32*7168}
    s_add_u32 s60, s60, s61
    s_movk_i32 s62, 6720
    v_lshl_add_u32 v4, {lane}, 4, s60""")
    for i in range(7):
        A(f"""v_add_u32 v2, {64*i}, {lane}
        v_mul_u32_u24 v2, 2341, v2
        v_lshrrev_b32 v2, 16, v2
        v_mad_u32_u24 v3, v2, s62, v4
        v_and_b32 v2, 8, v2
        v_lshlrev_b32 v2, 2, v2
        v_xor_b32 v3, v2, v3
        v_add_u32 v{vw+i}, {1024*i - (i%4)*1024}, v3
        v_add_u32 v{vw+i+7}, {1024*i + 16*7168 - ((i+7)%4)*1024}, v3""")
for q in range(448):
    assert (q*2341) >> 16 == q // 28

def issue_x(A, vx, srdx, soff, m0base):
    for i in range(8):
        if i % 4 == 0:
            A(f"s_add_u32 m0, {m0base}, {(i//4)*4096}\ns_nop 0")
        A(f"buffer_load_dwordx4 v{vx+i}, {sr(srdx,4)}, {soff} offen offset:{(i%4)*1024} lds")
def issue_w(A, vw, srdw, soff, m0base):
    for i in range(14):
        if i % 4 == 0:
            A(f"s_add_u32 m0, {m0base}, {(i//4)*4096}\ns_nop 0")
        A(f"buffer_load_dwordx4 v{vw+i}, {sr(srdw,4)}, {soff} offen offset:{(i%4)*1024} lds")

def w_read_addr(A, wf, we, wo, w6, lane="v1"):
    A(f"""v_lshrrev_b32 v2, 4, {lane}
    v_bfe_u32 v3, {lane}, 2, 2
    v_lshl_add_u32 v3, v2, 3, v3
    v_mul_u32_u24 v3, 448, v3
    v_and_b32 v4, 3, {lane}
    v_lshl_add_u32 v3, v4, 3, v3
    v_add_u32 v3, {XPART}, v3
    v_and_b32 v2, 1, v2
    v_lshlrev_b32 v4, 5, v2
    s_lshl_b32 s60, {wf}, 8
    v_add_u32 v5, s60, v3
    v_add_u32 v{we}, v5, v4
    v_sub_u32 v{wo}, v5, v4
    v_xor_b32 v2, {wf}, v2
    v_lshlrev_b32 v2, 5, v2
    v_add3_u32 v{w6}, v3, v2, 64
    v_add_u32 v{w6}, 128, v{w6}""")

def w_reads(dst, step, we, wo, w6, ft):
    out = []
    for hh in range(2):
        off = (32*step + 4*hh)*448
        if ft < 6:
            out.append(f"ds_read_b64_tr_b16 {vr(dst+hh*2,2)}, v{we if ft%2==0 else wo} offset:{off+ft*32}")
        else:
            out.append(f"ds_read_b64_tr_b16 {vr(dst+hh*2,2)}, v{w6} offset:{off}")
    return out

def job_stats(A, sw, sc=""):
    srd(A, 8, P_Q, MB4)
    srd(A, 12, P_WS, ST_BYTES, WS_ST)
    A(f"""s_lshl_b32 s60, s2, 3
    s_lshl_b32 s61, {sw}, 2
    s_add_u32 s60, s60, s61
    v_lshrrev_b32 v2, 4, v1
    v_add_u32 v2, s60, v2
    v_and_b32 v3, 15, v1
    v_lshlrev_b32 v4, 4, v3
    v_lshl_add_u32 v4, v2, 11, v4""")
    for j in range(8):
        A(f"buffer_load_dwordx4 {vr(16+4*j,4)}, v4, s[8:11], 0 offen offset:{j*256}")
    A("s_waitcnt vmcnt(0)")
    X = 48
    for j in range(32):
        A(f"v_lshlrev_b32 v{X+2*j}, 16, v{16+j}\nv_and_b32 v{X+2*j+1}, 0xffff0000, v{16+j}")
    A(f"v_pk_add_f32 v[6:7], {vr(X,2)}, {vr(X+2,2)}")
    A(f"v_pk_add_f32 v[8:9], {vr(X+4,2)}, {vr(X+6,2)}")
    for j in range(4, 32):
        d = 6 if j % 2 == 0 else 8
        A(f"v_pk_add_f32 {vr(d,2)}, {vr(d,2)}, {vr(X+2*j,2)}")
    def rowsum(reg):
        A(f"v_pk_add_f32 v[6:7], v[6:7], v[8:9]\ns_nop 0\nv_add_f32 v{reg}, v6, v7")
        for r in (8, 4, 2, 1):
            A(f"s_nop 1\nv_add_f32_dpp v{reg}, v{reg}, v{reg} row_ror:{r} row_mask:0xf bank_mask:0xf")
        A(f"v_mul_f32 v{reg}, {f32(1/1024)}, v{reg}")
    rowsum(10)
    for j in range(32):
        A(f"v_pk_add_f32 {vr(X+2*j,2)}, {vr(X+2*j,2)}, v[10:11] op_sel_hi:[1,0] neg_lo:[0,1] neg_hi:[0,1]")
    A(f"v_pk_mul_f32 v[6:7], {vr(X,2)}, {vr(X,2)}")
    A(f"v_pk_mul_f32 v[8:9], {vr(X+2,2)}, {vr(X+2,2)}")
    for j in range(2, 32):
        d = 6 if j % 2 == 0 else 8
        A(f"v_pk_fma_f32 {vr(d,2)}, {vr(X+2*j,2)}, {vr(X+2*j,2)}, {vr(d,2)}")
    rowsum(11)
    A(f"""v_cvt_pk_bf16_f32 v12, v10, v11
    v_lshlrev_b32 v10, 16, v12
    v_and_b32 v11, 0xffff0000, v12
    v_add_f32 v11, {f32(1e-5)}, v11
    v_cvt_pk_bf16_f32 v11, v11, v11
    v_lshlrev_b32 v11, 16, v11
    v_sqrt_f32 v11, v11
    s_nop 0
    v_cvt_pk_bf16_f32 v11, v11, v11
    v_lshlrev_b32 v11, 16, v11
    v_lshlrev_b32 v2, 3, v2
    v_cmp_eq_u32 vcc, 0, v3
    s_and_saveexec_b64 s[62:63], vcc
    buffer_store_dwordx2 v[10:11], v2, s[12:15], 0 offen {sc}
    s_mov_b64 exec, s[62:63]""")

def job_kv(A, sw):
    srd(A, 8, P_K, MB4)
    srd(A, 12, P_V, MB4)
    srd(A, 16, P_SK, 8192)
    srd(A, 20, P_WS, KVT_BYTES, WS_KVT)
    A(f"""s_lshr_b32 s60, s2, 4
    s_lshl_b32 s60, s60, 4
    s_lshl_b32 s61, {sw}, 3
    s_add_u32 s60, s60, s61
    v_lshrrev_b32 v2, 3, v1
    v_add_u32 v2, s60, v2
    s_and_b32 s61, s2, 15
    s_lshl_b32 s62, s61, 3
    v_and_b32 v3, 7, v1
    v_add_u32 v4, s62, v3
    v_lshlrev_b32 v5, 4, v4
    v_lshl_add_u32 v5, v2, 14, v5
    v_subrev_u32 v6, 6144, v5
    v_lshlrev_b32 v7, 6, v4
    s_movk_i32 s64, 4096
    s_movk_i32 s65, 8192
    s_movk_i32 s66, 12288""")
    KR, VR, TR = 16, 60, 92
    so = ["0", "s64", "s65", "s66"]
    for j in range(4):
        A(f"buffer_load_dwordx4 {vr(TR+4*j,4)}, v7, s[16:19], 0 offen offset:{16*j}")
    for r in range(3):
        A(f"buffer_load_dwordx4 {vr(KR+4*r,4)}, v6, s[8:11], {so[r//2]} offen offset:{(r%2)*2048}")
    for r in range(8):
        A(f"buffer_load_dwordx4 {vr(KR+12+4*r,4)}, v5, s[8:11], {so[r//2]} offen offset:{(r%2)*2048}")
    for r in range(8):
        A(f"buffer_load_dwordx4 {vr(VR+4*r,4)}, v5, s[12:15], {so[r//2]} offen offset:{(r%2)*2048}")
    A(f"""v_sub_u32 v8, 255, v2
    v_lshlrev_b32 v8, 6, v8
    v_and_b32 v9, 3, v3
    v_lshl_add_u32 v8, v9, 4, v8
    v_lshrrev_b32 v9, 2, v3
    v_lshl_add_u32 v8, v9, 17, v8
    s_lshl_b32 s61, s61, 18
    v_add_u32 v8, s61, v8
    s_waitcnt vmcnt(0)""")
    TW, KU, VU, OUT = 108, 116, 138, 156
    for e in range(4):
        for j in range(4):
            for c in range(2):
                src = TR + 4*e + 2*c + j//2
                if j % 2 == 0: A(f"v_lshlrev_b32 v{TW+2*j+c}, 16, v{src}")
                else: A(f"v_and_b32 v{TW+2*j+c}, 0xffff0000, v{src}")
        for r in range(11):
            A(f"v_lshlrev_b32 v{KU+2*r}, 16, v{KR+4*r+e}\nv_and_b32 v{KU+2*r+1}, 0xffff0000, v{KR+4*r+e}")
        for r in range(8):
            A(f"v_lshlrev_b32 v{VU+2*r}, 16, v{VR+4*r+e}\nv_and_b32 v{VU+2*r+1}, 0xffff0000, v{VR+4*r+e}")
        for r in range(8):
            t = 10 + 2*(r % 2)
            A(f"v_pk_mul_f32 {vr(t,2)}, {vr(KU+2*r,2)}, {vr(TW+6,2)}")
            for j in (2, 1, 0):
                A(f"v_pk_fma_f32 {vr(t,2)}, {vr(KU+2*(r+3-j),2)}, {vr(TW+2*j,2)}, {vr(t,2)}")
            A(f"v_pk_mul_f32 {vr(VU+2*r,2)}, {vr(t,2)}, {vr(VU+2*r,2)}")
        o = OUT + (e % 2)*8
        for c in range(2):
            for q in range(4):
                A(f"v_cvt_pk_bf16_f32 v{o+4*c+q}, v{VU+2*(7-2*q)+c}, v{VU+2*(6-2*q)+c}")
        for c in range(2):
            A(f"s_mov_b32 s60, {(2*e+c)*16384}\nbuffer_store_dwordx4 {vr(o+4*c,4)}, v8, s[20:23], s60 offen")

def job_colsum(A, sw, slotoff, ks, nreg, sc=""):
    WE, WO, W6 = 10, 11, 12
    w_read_addr(A, sw, WE, WO, W6)
    if slotoff != "0":
        for r in (WE, WO, W6): A(f"v_add_u32 v{r}, {slotoff}, v{r}")
    srd(A, 8, P_WS, CS_BYTES, WS_CS)
    for j in range(4): A(f"v_mov_b32 v{16+j}, 0x3f803f80")
    F, ACC = 20, 76
    for ft in range(7):
        for st in range(2):
            for x in w_reads(F + (ft*2+st)*4, st, WE, WO, W6, ft): A(x)
        if ft % 2 == 1: A("s_waitcnt lgkmcnt(0)")
    A("s_waitcnt lgkmcnt(0)")
    for ft in range(7):
        A(f"v_mfma_f32_16x16x32_bf16 {vr(ACC+4*ft,4)}, {vr(F+ft*8,4)}, v[16:19], 0")
    for ft in range(7):
        A(f"v_mfma_f32_16x16x32_bf16 {vr(ACC+4*ft,4)}, {vr(F+ft*8+4,4)}, v[16:19], {vr(ACC+4*ft,4)}")
    A(f"""s_mul_i32 s60, {ks}, {3584*4}
    s_mul_i32 s61, {nreg}, {224*4}
    s_add_u32 s60, s60, s61
    s_lshl_b32 s61, {sw}, 9
    s_add_u32 s61, s61, s60
    s_lshl_b32 s62, {sw}, 6
    s_add_u32 s62, s62, s60
    v_and_b32 v2, 48, v1
    v_and_b32 v3, 15, v1
    v_cmp_eq_u32 vcc, 0, v3
    s_nop 4
    s_and_saveexec_b64 s[64:65], vcc""")
    for ft in range(6):
        A(f"buffer_store_dwordx4 {vr(ACC+4*ft,4)}, v2, s[8:11], s61 offen offset:{ft*64} {sc}")
    A(f"buffer_store_dwordx4 {vr(ACC+24,4)}, v2, s[8:11], s62 offen offset:{6*64} {sc}")
    A("s_mov_b64 exec, s[64:65]")

def job_gather(A, sw, sc=""):
    srd(A, 8, P_WS, CS_BYTES, WS_CS)
    srd(A, 12, P_WS, ST_BYTES, WS_ST)
    A(f"""v_and_b32 v2, 31, v1
    v_min_u32 v2, 27, v2
    v_lshrrev_b32 v3, 5, v1
    s_mov_b32 s60, {8*3584*4}
    v_mul_lo_u32 v3, v3, s60
    v_lshl_add_u32 v3, v2, 4, v3
    s_mul_i32 s60, s5, {224*4}
    s_mul_i32 s61, {sw}, {112*4}
    s_add_u32 s60, s60, s61""")
    for j in range(8):
        A(f"buffer_load_dwordx4 {vr(16+4*j,4)}, v3, s[8:11], s60 offen {sc}\ns_add_u32 s60, s60, {3584*4}")
    A(f"""s_lshl_b32 s60, s4, 10
    s_lshl_b32 s62, {sw}, 9
    s_add_u32 s60, s60, s62
    v_lshlrev_b32 v4, 3, v1
    buffer_load_dwordx2 v[8:9], v4, s[12:15], s60 offen {sc}
    s_waitcnt vmcnt(0)""")
    for j in range(1, 8):
        A(f"v_pk_add_f32 v[16:17], v[16:17], {vr(16+4*j,2)}\nv_pk_add_f32 v[18:19], v[18:19], {vr(18+4*j,2)}")
    for q in range(4): A(f"v_mov_b32 v{20+q}, v{16+q}")
    A("s_nop 1")
    for q in range(4): A(f"v_permlane32_swap_b32 v{16+q}, v{20+q}")
    A(f"""v_rcp_f32 v10, v9
    v_pk_add_f32 v[16:17], v[16:17], v[20:21]
    v_pk_add_f32 v[18:19], v[18:19], v[22:23]
    v_mul_f32 v10, {f32(-LOG2E)}, v10
    v_mov_b32 v11, 0
    v_lshl_add_u32 v2, v2, 4, s61
    v_add_u32 v2, {L_CS}, v2
    ds_write_b128 v2, v[16:19]
    s_lshl_b32 s62, {sw}, 10
    s_add_u32 s62, s62, {L_ST}
    v_lshl_add_u32 v4, v1, 4, s62
    ds_write_b128 v4, v[8:11]
    s_waitcnt lgkmcnt(0)""")

def gen_k0():
    A = Asm()
    prologue(A, "L_k0_end")
    A("s_lshr_b32 s70, s2, 4\ns_and_b32 s71, s2, 15")
    srd(A, 24, P_W1, W_BYTES)
    loader_addr_w(A, "s3", 200, "s71")
    A(f"s_mul_i32 s72, s70, {64*7168}\ns_mul_i32 s73, s3, 14336\ns_add_u32 s73, s73, {XPART}")
    issue_w(A, 200, 24, "s72", "s73")
    job_stats(A, "s3")
    stamp(A, 1)
    job_kv(A, "s3")
    stamp(A, 2)
    A("s_waitcnt vmcnt(0)\ns_barrier")
    stamp(A, 3)
    job_colsum(A, "s3", "0", "s70", "s71")
    stamp_end(A, 0)
    A("L_k0_end:\ns_endpgm")
    return kernel("k0_kernel", A.text(), 256)

def gen_k1():
    A = Asm()
    prologue(A, "L_k1_end")
    A("""s_cmp_lt_u32 s3, 4
    s_cbranch_scc1 L_k1_cons
    s_cmp_lt_u32 s3, 6
    s_cbranch_scc1 L_k1_load""")
    A("s_sub_u32 s33, s3, 6")
    job_gather(A, "s33")
    for i in range(17): A("s_barrier")
    A("s_endpgm")
    A("L_k1_load:\ns_sub_u32 s33, s3, 4")
    srd(A, 8, P_Q, MB4)
    srd(A, 12, P_W1, W_BYTES)
    VX, VW = 16, 24
    loader_addr_x(A, "s33", VX)
    A(f"""s_lshl_b32 s70, s33, 13
    s_mul_i32 s71, s33, 14336
    s_add_u32 s71, s71, {XPART}
    s_mov_b32 s72, 0
    s_mov_b32 s73, 0""")
    issue_x(A, VX, 8, "s72", "s70")
    loader_addr_w(A, "s33", VW, "s5")
    issue_w(A, VW, 12, "s73", "s71")
    A(f"""s_mov_b32 s74, 1
    s_mov_b32 s75, {SLOT}
    L_k1_lloop:
    s_add_u32 s72, s72, 128
    s_add_u32 s73, s73, {64*7168}
    s_add_u32 s76, s70, s75
    s_add_u32 s77, s71, s75""")
    issue_x(A, VX, 8, "s72", "s76")
    issue_w(A, VW, 12, "s73", "s77")
    A(f"""s_add_u32 s75, s75, {SLOT}
    s_cmp_eq_u32 s75, {3*SLOT}
    s_cselect_b32 s75, 0, s75
    s_add_u32 s74, s74, 1
    s_cmp_lt_u32 s74, 16
    s_waitcnt vmcnt(22)
    s_barrier
    s_cbranch_scc1 L_k1_lloop
    s_waitcnt vmcnt(0)
    s_barrier
    s_barrier
    s_endpgm""")
    A("L_k1_cons:\ns_and_b32 s34, s3, 1\ns_lshr_b32 s35, s3, 1")
    XA0, XA1, WE, WO, W6, LN = 200, 201, 202, 203, 204, 205
    A(f"v_mov_b32 v{LN}, v1")
    w_read_addr(A, "s35", WE, WO, W6)
    A(f"""v_and_b32 v2, 15, v1
    v_lshrrev_b32 v3, 1, v2
    v_lshrrev_b32 v4, 4, v1
    v_xor_b32 v3, v3, v4
    v_lshlrev_b32 v3, 4, v3
    v_lshl_add_u32 v3, v2, 7, v3
    s_lshl_b32 s60, s34, 13
    v_add_u32 v{XA0}, s60, v3
    v_xor_b32 v{XA1}, 64, v{XA0}""")
    for i in range(112): A(f"v_mov_b32 v{i}, 0")
    SW = [112, 156]; SX = [140, 184]
    def reads(p, step):
        xa = XA0 if step == 0 else XA1
        xr = [f"ds_read_b128 {vr(SX[p]+4*mt,4)}, v{xa} offset:{mt*2048}" for mt in range(4)]
        wr = [w_reads(SW[p]+4*ft, step, WE, WO, W6, ft) for ft in range(7)]
        return [xr[0]] + wr[0] + xr[1:] + [x for l in wr[1:] for x in l]
    def mfmas(p):
        return [f"v_mfma_f32_16x16x32_bf16 {vr((ft*4+mt)*4,4)}, {vr(SW[p]+4*ft,4)}, {vr(SX[p]+4*mt,4)}, {vr((ft*4+mt)*4,4)}"
                for ft in range(7) for mt in range(4)]
    stamp(A, 1)
    A("s_setprio 1\ns_barrier")
    stamp(A, 2)
    for x in reads(0, 0): A(x)
    A(f"s_mov_b32 s74, 0\ns_mov_b32 s75, 0\nL_k1_cloop:\ns_waitcnt lgkmcnt(0)")
    adv = [f"s_add_u32 s75, s75, 1\ns_cmp_eq_u32 s75, 3", f"s_cselect_b32 s76, {(-2*SLOT) & 0xffffffff}, {SLOT}\ns_cselect_b32 s75, 0, s75"]
    adv = [f"s_add_u32 s75, s75, 1\ns_cmp_eq_u32 s75, 3", f"s_cselect_b32 s76, s78, s79\ns_cselect_b32 s75, 0, s75"]
    adv += [f"v_add_u32 v{r}, s76, v{r}" for r in (XA0, XA1, WE, WO, W6)]
    A.L.insert(len(A.L) - 2, f"    s_mov_b32 s78, {(-2*SLOT) & 0xffffffff}\n    s_mov_b32 s79, {SLOT}")
    for x in interleave(mfmas(0), reads(1, 1) + adv): A(x)
    A("s_waitcnt lgkmcnt(0)\ns_barrier")
    for x in interleave(mfmas(1), reads(0, 0) + ["s_add_u32 s74, s74, 1", "s_cmp_lt_u32 s74, 16"]): A(x)
    A("s_cbranch_scc1 L_k1_cloop")
    A("s_waitcnt lgkmcnt(0)")
    stamp(A, 3)
    srd(A, 8, P_WS, H_BYTES, WS_H)
    ST, CS, T0, OUT = 112, 128, 156, 172
    A(f"""v_and_b32 v206, 15, v{LN}
    v_lshlrev_b32 v206, 4, v206
    s_lshl_b32 s60, s34, 10
    s_add_u32 s60, s60, {L_ST}
    v_add_u32 v206, s60, v206
    v_and_b32 v207, 48, v{LN}
    s_lshl_b32 s60, s35, 9
    s_add_u32 s60, s60, {L_CS}
    v_add_u32 v208, s60, v207
    s_lshl_b32 s60, s35, 6
    s_add_u32 s60, s60, {L_CS + 384}
    v_add_u32 v209, s60, v207""")
    for mt in range(4): A(f"ds_read_b128 {vr(ST+4*mt,4)}, v206 offset:{mt*256}")
    for ft in range(6): A(f"ds_read_b128 {vr(CS+4*ft,4)}, v208 offset:{ft*64}")
    A(f"ds_read_b128 {vr(CS+24,4)}, v209")
    A(f"""s_mul_i32 s60, s4, {112*8192}
    s_mul_i32 s61, s5, {7*8192}
    s_add_u32 s60, s60, s61
    s_lshl_b32 s61, s34, 12
    s_add_u32 s60, s60, s61
    s_add_u32 s64, s60, {3*8192}
    s_lshl_b32 s61, s35, 15
    s_add_u32 s61, s61, s60
    s_add_u32 s62, s61, 8192
    s_add_u32 s63, s61, 16384
    v_lshlrev_b32 v206, 4, v{LN}
    s_lshl_b32 s65, s35, 3
    v_add_u32 v207, s65, v206
    s_waitcnt lgkmcnt(0)""")
    def silu_tile(ft, mt, dst, t):
        a = (ft*4+mt)*4; st = ST+4*mt; cs = CS+4*ft
        for h in range(2):
            A(f"v_pk_fma_f32 {vr(a+2*h,2)}, {vr(cs+2*h,2)}, {vr(st,2)}, {vr(a+2*h,2)} op_sel_hi:[1,0,1] neg_lo:[1,0,0] neg_hi:[1,0,0]")
        for h in range(2):
            A(f"v_pk_mul_f32 {vr(t+2*h,2)}, {vr(a+2*h,2)}, {vr(st+2,2)} op_sel_hi:[1,0]")
        for q in range(4): A(f"v_exp_f32 v{t+q}, v{t+q}")
        A("s_nop 0")
        for h in range(2):
            A(f"v_pk_fma_f32 {vr(t+2*h,2)}, {vr(t+2*h,2)}, {vr(st,2)}, {vr(st,2)} op_sel:[0,1,1] op_sel_hi:[1,1,1]")
        for q in range(4): A(f"v_rcp_f32 v{t+q}, v{t+q}")
        A("s_nop 0")
        for h in range(2):
            A(f"v_pk_mul_f32 {vr(t+2*h,2)}, {vr(t+2*h,2)}, {vr(a+2*h,2)}")
        for h in range(2):
            A(f"v_cvt_pk_bf16_f32 v{dst+h}, v{t+2*h}, v{t+2*h+1}")
    cnt = 0
    for pr in range(3):
        for mt in range(4):
            o = OUT + 4*(cnt % 4); cnt += 1
            silu_tile(2*pr, mt, o, T0)
            silu_tile(2*pr+1, mt, o+2, T0+4)
            A(f"buffer_store_dwordx4 {vr(o,4)}, v206, s[8:11], s{61+pr} offen offset:{mt*1024}")
    for mt in range(4):
        o = OUT + 4*(cnt % 4); cnt += 1
        silu_tile(6, mt, o, T0 + 4*(mt % 2))
        A(f"buffer_store_dwordx2 {vr(o,2)}, v207, s[8:11], s64 offen offset:{mt*1024}")
    stamp(A, 4)
    stamp_end(A, 1)
    A("L_k1_end:\ns_endpgm")
    return kernel("k1_kernel", A.text(), 256)
```

```python
from gen1 import *

RING = 32768
CREG = 20224
HA0, HA1, UA, UB = 0, 4352, 8704, 8704 + 5760
K2_LDS = RING + 4*CREG
E_OFF, ZT_OFF, XT_OFF = 0, 8192, 8192 + 4096

def conv_job(A, cw, bar, sc=""):
    srd(A, 8, P_WS, KVT_BYTES, WS_KVT)
    srd(A, 12, P_SSM, MB4)
    srd(A, 16, P_WS, Z_BYTES, WS_Z)
    A(f"""s_lshr_b32 s60, s2, 3
    s_lshl_b32 s60, s60, 5
    s_lshl_b32 s61, {cw}, 3
    s_add_u32 s60, s60, s61
    s_and_b32 s61, s2, 7
    s_add_u32 s68, s60, s61
    s_lshl_b32 s69, s68, 12
    s_lshl_b32 s60, s2, 14
    s_lshl_b32 s61, {cw}, 4
    s_add_u32 s60, s60, s61
    v_lshlrev_b32 v2, 6, v1
    v_lshlrev_b32 v3, 4, v1""")
    U, H = 16, 32
    for j in range(4):
        A(f"buffer_load_dwordx4 {vr(U+4*j,4)}, v2, s[8:11], s60 offen\ns_add_u32 s60, s60, 4096")
    for j in range(4):
        A(f"buffer_load_dwordx4 {vr(H+4*j,4)}, v3, s[12:15], s69 offen offset:{j*1024}")
    A(f"""s_lshl_b32 s60, s68, 1
    s_and_b32 s60, s60, 0xfffffffc
    s_load_dword s67, s[{P_D}:{P_D+1}], s60
    s_mul_i32 s70, {cw}, {CREG}
    s_add_u32 s70, s70, {RING}
    v_add_u32 v4, s70, v3
    v_lshrrev_b32 v5, 4, v1
    v_mul_u32_u24 v5, 32, v5
    v_add_u32 v5, v5, v4
    v_mov_b32 v8, 0
    v_mov_b32 v9, 0
    v_mov_b32 v10, 0
    v_mov_b32 v11, 0""")
    A(f"""ds_write_b128 v4, v[8:11] offset:{HA0}
    ds_write_b128 v4, v[8:11] offset:{HA1}
    ds_write_b128 v4, v[8:11] offset:{UA + 16*288 - 32}
    ds_write_b128 v4, v[8:11] offset:{UA + 20*288 - 1024}
    ds_write_b128 v4, v[8:11] offset:{UB + 16*288 - 32}
    ds_write_b128 v4, v[8:11] offset:{UB + 20*288 - 1024}""")
    bar(6)
    A("s_waitcnt vmcnt(0) lgkmcnt(0)")
    stamp(A, 1)
    A(f"""s_lshr_b32 s60, s67, 16
    s_and_b32 s61, s68, 1
    s_cmp_eq_u32 s61, 1
    s_cselect_b32 s67, s60, s67
    s_lshl_b32 s67, s67, 16""")
    B2, H0 = 48, 64
    for j in range(4):
        A(f"ds_write_b128 v5, {vr(U+4*j,4)} offset:{UA + j*1152}")
        A(f"ds_write_b128 v4, {vr(H+4*j,4)} offset:{HA1 + 256 + j*1024}")
    for j in range(4):
        for q in range(3): A(f"v_mov_b32 v{B2+4*j+q}, v{U+4*j+q+1}")
        A(f"v_mov_b32_dpp v{B2+4*j+3}, v{U+4*j} wave_shl:1 row_mask:0xf bank_mask:0xf bound_ctrl:0")
        A(f"v_mov_b32_dpp v12, v{H+4*j+3} wave_shr:1 row_mask:0xf bank_mask:0xf bound_ctrl:0")
        if j < 3: A(f"v_readlane_b32 s60, v{U+4*j+4}, 0")
        if j > 0: A(f"v_readlane_b32 s61, v{H+4*j-1}, 63")
        A("s_nop 3")
        if j < 3: A(f"v_writelane_b32 v{B2+4*j+3}, s60, 63")
        if j > 0: A(f"v_writelane_b32 v12, s61, 0")
        A(f"v_alignbit_b32 v{H0+4*j}, v{H+4*j}, v12, 16")
        for q in range(1, 4): A(f"v_alignbit_b32 v{H0+4*j+q}, v{H+4*j+q}, v{H+4*j+q-1}, 16")
        A(f"ds_write_b128 v5, {vr(B2+4*j,4)} offset:{UB + j*1152}")
        A(f"ds_write_b128 v4, {vr(H0+4*j,4)} offset:{HA0 + 256 + j*1024}")
    A(f"""v_and_b32 v6, 15, v1
    v_cmp_eq_u32 vcc, 0, v6
    s_and_saveexec_b64 s[62:63], vcc""")
    for j in range(1, 4):
        A(f"ds_write_b128 v5, {vr(U+4*j,4)} offset:{UA + j*1152 - 32}")
        A(f"ds_write_b128 v5, {vr(B2+4*j,4)} offset:{UB + j*1152 - 32}")
    A(f"""s_and_b64 exec, exec, -2
    ds_write_b128 v5, {vr(U,4)} offset:{UA - 32}
    ds_write_b128 v5, {vr(B2,4)} offset:{UB - 32}
    s_mov_b64 exec, s[62:63]""")
    AA, BA = 14, 15
    A(f"""v_lshrrev_b32 v7, 4, v1
    v_add_u32 v{AA}, v6, v7
    v_lshl_add_u32 v{AA}, v{AA}, 4, s70
    v_and_b32 v8, 3, v1
    v_sub_u32 v8, 3, v8
    v_mul_u32_u24 v8, 288, v8
    v_lshl_add_u32 v8, v7, 4, v8
    v_bfe_u32 v9, v1, 2, 1
    v_sub_u32 v9, 1, v9
    v_mul_u32_u24 v9, 5760, v9
    v_bfe_u32 v10, v1, 3, 1
    v_sub_u32 v10, 1, v10
    v_lshlrev_b32 v10, 3, v10
    v_add3_u32 v8, v8, v9, v10
    v_add_u32 v{BA}, s70, v8""")
    ACC = 16; SA = [48, 96]; SB = [80, 128]
    A("s_waitcnt lgkmcnt(0)")
    for i in range(32): A(f"v_mov_b32 v{ACC+i}, 0")
    def reads(p, mm, nxt):
        ar = {}
        for a in range(4):
            for rho in range(2):
                ar[(a, rho)] = f"ds_read_b128 {vr(SA[p]+(a*2+rho)*4,4)}, v{AA} offset:{(HA0, HA1)[rho] + 16 + 64*(mm + 4*nxt + 16*a)}"
        br = {}
        for e in range(4):
            off = UA + (12 - 4*e + nxt)*288 + 64*mm
            br[e] = [f"ds_read_b64 {vr(SB[p]+e*4+2*h,2)}, v{BA} offset:{off+8*h}" for h in range(2)]
        return br[0] + [ar[(0,0)], ar[(0,1)]] + br[1] + br[2] + br[3] + [ar[(a, r)] for a in (1,2,3) for r in range(2)]
    def mfmas(p):
        out = []
        for a in range(4):
            for c in range(a, 4):
                for rho in range(2):
                    d = vr(ACC+(c*2+rho)*4, 4)
                    out.append(f"v_mfma_f32_16x16x32_bf16 {d}, {vr(SA[p]+(a*2+rho)*4,4)}, {vr(SB[p]+(c-a)*4,4)}, {d}")
        return out
    stamp(A, 2)
    for x in reads(0, 0, 0): A(x)
    lp = A.label("conv")
    A(f"s_mov_b32 s71, 0\n{lp}:")
    for mm in range(4):
        p = mm % 2
        A("s_waitcnt lgkmcnt(0)")
        seq = interleave(mfmas(p), reads(1-p, (mm+1) % 4, 1 if mm == 3 else 0))
        half = len(seq)//2
        for x in seq[:half]: A(x)
        bar(1)
        for x in seq[half:]: A(x)
        bar(1)
    A(f"""v_add_u32 v{AA}, 256, v{AA}
    v_add_u32 v{BA}, 288, v{BA}
    s_add_u32 s71, s71, 1
    s_cmp_lt_u32 s71, 4
    s_cbranch_scc1 {lp}
    s_waitcnt lgkmcnt(0)""")
    stamp(A, 3)
    KV = 48
    A(f"""v_and_b32 v8, 3, v1
    v_bfe_u32 v9, v1, 2, 2
    v_lshrrev_b32 v7, 4, v1
    v_sub_u32 v10, 3, v8
    v_mul_u32_u24 v10, 288, v10
    v_lshlrev_b32 v11, 6, v7
    v_lshl_add_u32 v11, v9, 2, v11
    v_sub_u32 v10, v10, v11
    v_add_u32 v10, s70, v10
    v_mul_u32_u24 v12, 272, v8
    v_add3_u32 v12, v12, v11, s70""")
    for c in range(4):
        for r in range(4):
            A(f"ds_read_b32 v{KV+c*4+r}, v10 offset:{UA + (12-4*c)*288 + 252 - 16*r}")
        A("s_waitcnt lgkmcnt(8)") if c >= 2 else None
    A("s_waitcnt lgkmcnt(0)")
    for c in range(4):
        for r in range(4):
            y0, y1, kv = ACC+(c*2)*4+r, ACC+(c*2+1)*4+r, KV+c*4+r
            A(f"""v_and_b32 v8, 0xffff0000, v{kv}
            v_lshlrev_b32 v9, 16, v{kv}
            v_fmac_f32 v{y0}, s67, v8
            v_fmac_f32 v{y1}, s67, v9
            v_cvt_pk_bf16_f32 v{kv}, v{y0}, v{y1}
            ds_write_b32 v12, v{kv} offset:{HA0 + c*4*272 + 16*r}""")
    A(f"""v_lshrrev_b32 v5, 4, v1
    v_lshl_add_u32 v5, v5, 4, v4
    s_waitcnt lgkmcnt(0)""")
    for c in range(4): A(f"ds_read_b128 {vr(64+4*c,4)}, v5 offset:{HA0 + c*4*272}")
    for c in range(4):
        A(f"s_waitcnt lgkmcnt({3-c})\nbuffer_store_dwordx4 {vr(64+4*c,4)}, v3, s[16:19], s69 offen offset:{c*1024} {sc}")

def gen_k2conv():
    A = Asm()
    prologue(A, "L_k2_end")
    conv_job(A, "s3", lambda n: None)
    stamp_end(A, 2)
    A("L_k2_end:\ns_endpgm")
    return kernel("k2_kernel", A.text(), 168)

def eprep_job(A, cw, sc=""):
    srd(A, 8, P_WS, Z_BYTES, WS_Z)
    srd(A, 12, P_Q, MB4)
    srd(A, 20, P_WS, ST_BYTES, WS_ST)
    A(f"""s_mul_i32 s70, {cw}, {CREG}
    s_add_u32 s70, s70, {RING}
    s_lshl_b32 s60, s4, 7
    s_lshl_b32 s61, {cw}, 5
    s_add_u32 s60, s60, s61
    s_lshl_b32 s61, s5, 18
    s_lshl_b32 s62, s60, 1
    s_add_u32 s61, s61, s62
    v_lshrrev_b32 v2, 2, v1
    v_and_b32 v3, 3, v1
    v_lshlrev_b32 v3, 4, v3
    v_lshl_add_u32 v2, v2, 12, v3""")
    for j in range(4):
        A(f"buffer_load_dwordx4 {vr(16+4*j,4)}, v2, s[8:11], s61 offen {sc}\ns_add_u32 s61, s61, {16*4096}")
    A(f"""s_lshl_b32 s61, s60, 11
    s_lshl_b32 s62, s5, 7
    s_add_u32 s61, s61, s62
    v_lshrrev_b32 v4, 3, v1
    v_and_b32 v5, 7, v1
    v_lshlrev_b32 v5, 4, v5
    v_lshl_add_u32 v6, v4, 11, v5""")
    for j in range(4):
        A(f"buffer_load_dwordx4 {vr(32+4*j,4)}, v6, s[12:15], s61 offen\ns_add_u32 s61, s61, {8*2048}")
    A(f"""s_lshl_b32 s61, s60, 3
    v_and_b32 v7, 15, v1
    v_lshlrev_b32 v8, 3, v7
    buffer_load_dwordx2 v[48:49], v8, s[20:23], s61 offen
    buffer_load_dwordx2 v[50:51], v8, s[20:23], s61 offen offset:128
    v_lshl_add_u32 v9, v1, 4, s70
    v_mul_u32_u24 v10, 144, v4
    v_add3_u32 v10, v10, v5, s70
    v_lshrrev_b32 v11, 2, v1
    v_and_b32 v12, 3, v1
    v_lshlrev_b32 v12, 3, v12
    v_lshl_add_u32 v11, v11, 6, v12
    v_add_u32 v11, s70, v11
    v_mul_u32_u24 v12, 144, v7
    v_lshrrev_b32 v13, 4, v1
    v_lshl_add_u32 v12, v13, 3, v12
    v_add_u32 v12, s70, v12
    s_waitcnt vmcnt(0)""")
    for j in range(4):
        A(f"ds_write_b128 v9, {vr(16+4*j,4)} offset:{ZT_OFF + j*1024}")
        A(f"ds_write_b128 v10, {vr(32+4*j,4)} offset:{XT_OFF + j*8*144}")
    A("v_rcp_f32 v49, v49\nv_rcp_f32 v51, v51\ns_waitcnt lgkmcnt(0)")
    for T in range(4):
        for mt in range(2):
            i = T*2+mt
            A(f"ds_read_b64_tr_b16 {vr(16+2*i,2)}, v11 offset:{ZT_OFF + T*1024 + mt*32}")
            A(f"ds_read_b64 {vr(32+2*i,2)}, v12 offset:{XT_OFF + mt*16*144 + T*32}")
        A("s_waitcnt lgkmcnt(0)") if T % 2 == 1 else None
    for T in range(4):
        for mt in range(2):
            i = T*2+mt; st = 48+2*mt; o = 64 + 4*(i % 2)
            for h in range(2):
                A(f"""v_lshlrev_b32 v52, 16, v{16+2*i+h}
                v_and_b32 v53, 0xffff0000, v{16+2*i+h}
                v_lshlrev_b32 v54, 16, v{32+2*i+h}
                v_and_b32 v55, 0xffff0000, v{32+2*i+h}
                v_pk_add_f32 v[56:57], v[54:55], {vr(st,2)} op_sel_hi:[1,0] neg_lo:[0,1] neg_hi:[0,1]
                v_pk_mul_f32 v[56:57], v[56:57], {vr(st,2)} op_sel:[0,1] op_sel_hi:[1,1]
                v_pk_fma_f32 {vr(o+2*h,2)}, v[56:57], v[52:53], v[54:55]""")
            A(f"ds_write_b128 v9, {vr(o,4)} offset:{E_OFF + i*1024}")
    A("s_waitcnt lgkmcnt(0)")

def gemm2_waves(A):
    srd(A, 8, P_WS, H_BYTES, WS_H)
    srd(A, 12, P_W2, W_BYTES)
    WT, VH, VD0, VD1, LN = 128, 132, 133, 134, 135
    SW = [32, 48]; HR = 64; E = 136
    A(f"""v_mov_b32 v{LN}, v1
    s_lshl_b32 s60, s3, 11
    v_lshl_add_u32 v{VH}, v1, 4, s60
    v_lshrrev_b32 v2, 3, v1
    v_lshrrev_b32 v3, 4, v1
    v_lshlrev_b32 v3, 1, v3
    v_xor_b32 v3, v3, v1
    v_and_b32 v3, 7, v3
    v_lshlrev_b32 v3, 4, v3
    v_lshl_add_u32 v3, v2, 11, v3
    s_lshl_b32 s61, s3, 15
    s_lshl_b32 s62, s5, 7
    s_add_u32 s61, s61, s62
    v_add_u32 v{VD0}, s61, v3
    v_add_u32 v{VD1}, {8*2048-1024}, v{VD0}
    s_mul_i32 s72, s4, {112*8192}
    s_add_u32 s73, s72, 8192
    s_mov_b32 s74, 0""")
    def hload(step8, s):
        return [f"buffer_load_dwordx4 {vr(HR+step8*8+4*mt,4)}, v{VH}, s[8:11], {s} offen offset:{mt*1024}" for mt in range(2)]
    def dma(slot):
        return [f"s_add_u32 m0, s60, {slot*8192}",
                f"buffer_load_dwordx4 v{VD0}, s[12:15], s74 offen lds",
                f"buffer_load_dwordx4 v{VD1}, s[12:15], s74 offen offset:1024 lds"]
    adv = ["s_add_u32 s72, s72, 16384", "s_add_u32 s73, s73, 16384", "s_add_u32 s74, s74, 131072"]
    for jj in range(4):
        d = dma(jj)
        A(d[0])
        for x in hload(2*jj, "s72") + d[1:] + hload(2*jj+1, "s73") + adv: A(x)
    A(f"""v_lshrrev_b32 v2, 2, v1
    v_bfe_u32 v3, v1, 3, 2
    v_lshlrev_b32 v3, 5, v3
    v_lshl_add_u32 v3, v2, 7, v3
    v_and_b32 v2, 3, v1
    v_lshl_add_u32 v{WT}, v2, 3, v3
    v_xor_b32 v{WT+1}, 32, v{WT}
    v_xor_b32 v{WT+2}, 64, v{WT}
    v_xor_b32 v{WT+3}, 96, v{WT}""")
    for i in range(32): A(f"v_mov_b32 v{i}, 0")
    def reads(p, slot, step):
        return [f"ds_read_b64_tr_b16 {vr(SW[p]+4*T+2*hh,2)}, v{WT+T} offset:{slot*8192 + step*4096 + hh*2048}"
                for T in range(4) for hh in range(2)]
    def mfmas(p, step8):
        return [f"v_mfma_f32_16x16x32_bf16 {vr((T*2+mt)*4,4)}, {vr(SW[p]+4*T,4)}, {vr(HR+step8*8+4*mt,4)}, {vr((T*2+mt)*4,4)}"
                for T in range(4) for mt in range(2)]
    stamp(A, 1)
    A("s_setprio 1\ns_waitcnt vmcnt(20)\ns_barrier")
    stamp(A, 2)
    for x in reads(0, 0, 0): A(x)
    A("""s_mov_b32 s75, 0
    L_g2_loop:
    s_cmp_eq_u32 s75, 13
    s_cselect_b32 s10, 0, s10
    s_cselect_b32 s14, 0, s14""")
    for sl in range(4):
        A("s_waitcnt lgkmcnt(0)")
        for x in interleave(mfmas(0, 2*sl), reads(1, sl, 1), per=2): A(x)
        for x in hload(2*sl, "s72"): A(x)
        A("s_waitcnt vmcnt(16) lgkmcnt(0)\ns_barrier")
        d = dma(sl)
        for x in interleave(mfmas(1, 2*sl+1), d[:1] + reads(0, (sl+1) % 4, 0) + d[1:], per=2): A(x)
        for x in hload(2*sl+1, "s73") + adv: A(x)
    A("""s_add_u32 s75, s75, 1
    s_cmp_lt_u32 s75, 14
    s_cbranch_scc1 L_g2_loop
    s_waitcnt vmcnt(0)""")
    stamp(A, 3)
    srd(A, 16, P_OUT, MB4)
    A(f"""s_mul_i32 s70, s3, {CREG}
    s_add_u32 s70, s70, {RING}
    v_lshl_add_u32 v{VH}, v{LN}, 4, s70""")
    for i in range(8): A(f"ds_read_b128 {vr(E+4*i,4)}, v{VH} offset:{E_OFF + i*1024}")
    A(f"""v_and_b32 v64, 15, v{LN}
    v_mul_u32_u24 v64, 144, v64
    v_lshrrev_b32 v65, 4, v{LN}
    v_lshl_add_u32 v64, v65, 3, v64
    v_add_u32 v64, s70, v64
    v_lshrrev_b32 v65, 3, v{LN}
    v_and_b32 v66, 7, v{LN}
    v_lshlrev_b32 v66, 4, v66
    v_mul_u32_u24 v67, 144, v65
    v_add3_u32 v67, v67, v66, s70
    v_lshl_add_u32 v68, v65, 11, v66
    s_lshl_b32 s60, s4, 18
    s_lshl_b32 s61, s3, 16
    s_add_u32 s60, s60, s61
    s_lshl_b32 s61, s5, 7
    s_add_u32 s60, s60, s61
    s_waitcnt vmcnt(0) lgkmcnt(0)""")
    for T in range(4):
        for mt in range(2):
            i = T*2+mt
            A(f"""v_pk_add_f32 {vr(4*i,2)}, {vr(4*i,2)}, {vr(E+4*i,2)}
            v_pk_add_f32 {vr(4*i+2,2)}, {vr(4*i+2,2)}, {vr(E+4*i+2,2)}
            v_cvt_pk_bf16_f32 v{72+2*i}, v{4*i}, v{4*i+1}
            v_cvt_pk_bf16_f32 v{72+2*i+1}, v{4*i+2}, v{4*i+3}
            ds_write_b64 v64, {vr(72+2*i,2)} offset:{XT_OFF + mt*16*144 + T*32}""")
    A("s_waitcnt lgkmcnt(0)")
    for j in range(4): A(f"ds_read_b128 {vr(96+4*j,4)}, v67 offset:{XT_OFF + j*8*144}")
    for j in range(4):
        A(f"s_waitcnt lgkmcnt({3-j})\nbuffer_store_dwordx4 {vr(96+4*j,4)}, v68, s[16:19], s60 offen\ns_add_u32 s60, s60, {8*2048}")

def gen_k3():
    A = Asm()
    prologue(A, "L_k3_end")
    A("s_cmp_lt_u32 s3, 4\ns_cbranch_scc1 L_k3_g\ns_sub_u32 s33, s3, 4")
    eprep_job(A, "s33")
    stamp_end(A, 3)
    A("s_endpgm\nL_k3_g:")
    gemm2_waves(A)
    stamp_end(A, 3)
    A("L_k3_end:\ns_endpgm")
    return kernel("k3_kernel", A.text(), 168)

HEAD = open("cdna_kernels/" + NAME + ".s.ref").read().split("; Override")[0]

def build_v1():
    hdr = HEAD + f"""; @launch kernel=k0_kernel grid=(256,1,1) block=(128,1,1) lds={SLOT}
; @launch kernel=k1_kernel grid=(256,1,1) block=(512,1,1) lds={K1_LDS}
; @launch kernel=k2_kernel grid=(256,1,1) block=(256,1,1) lds={K2_LDS}
; @launch kernel=k3_kernel grid=(256,1,1) block=(512,1,1) lds={K2_LDS}
.amdgcn_target "amdgcn-amd-amdhsa--gfx950"
.text
"""
    return hdr + gen_k0() + gen_k1() + gen_k2conv() + gen_k3()

if __name__ == "__main__":
    import gen1
    if "--stamps" in sys.argv:
        gen1.STAMPS = True; sys.argv.remove("--stamps")
    out = sys.argv[1] if len(sys.argv) > 1 else "cdna_kernels/" + NAME + ".s"
    open(out, "w").write(build_v1())
```
